```python
import torch

def _softmax(x, axis=-1):
    return torch.softmax(x, dim=axis)
def _gelu(x):
    return torch.nn.functional.gelu(x, approximate="tanh")
def _silu(x):
    return torch.nn.functional.silu(x)
def _sigmoid(x):
    return torch.sigmoid(x)
def _layernorm(x, axis=-1, eps=1e-5):
    m = x.mean(dim=axis, keepdim=True)
    v = x.var(dim=axis, keepdim=True, unbiased=False)
    return (x - m) / torch.sqrt(v + eps)
def _scatter_add(tgt, idx, src, axis=0):
    return tgt.clone().index_add_(axis, idx, src)
def _segment_sum(src, seg, n):
    out = torch.zeros((n,) + src.shape[1:], dtype=src.dtype)
    return out.index_add_(0, seg, src)
def _pad(x, pw):
    flat = tuple(v for pair in reversed(pw) for v in pair)
    return torch.nn.functional.pad(x, flat)

kernel_name = 'gated_mix__gqa_block_cached__dense_activation_gelu__decode'

def setup_inputs():

    _w = (lambda a: (lambda t: t.to(torch.bfloat16) if t.is_floating_point() else t)(torch.as_tensor(a)))
    def _A_setup():
        B, Sq, D = 4, 1, 512
        Hq, Hkv, Sk, Dh = 32, 8, 8192, 128
        assert Hq % Hkv == 0, (Hq, Hkv)
        return {
            "x": _w((lambda *s: torch.randn(*s, dtype=torch.bfloat16) * 0.05)(B, Sq, D)),
            "k_cache": _w((lambda *s: torch.randn(*s, dtype=torch.bfloat16) * 6.4)(B, Hkv, Sk, Dh)),
            "v_cache": _w((lambda *s: torch.randn(*s, dtype=torch.bfloat16) * 0.1)(B, Hkv, Sk, Dh)),
            "wq": _w((lambda *s: torch.randn(*s, dtype=torch.bfloat16) * 6.4)(D, Hq * Dh) * (D ** -0.5)),
            "wo": _w((lambda *s: torch.randn(*s, dtype=torch.bfloat16) * 0.1)(Hq * Dh, D) * ((Hq * Dh) ** -0.5)),
        }
    _A_in = _A_setup()

    def _B_setup():
        B, S, D, F = 4, 1, 512, 1792
        return {
            "x": _w((lambda *s: torch.randn(*s, dtype=torch.bfloat16) * 0.05)(B, S, D)),
            "w1": _w((lambda *s: torch.randn(*s, dtype=torch.bfloat16) * 3.2)(D, F) * (D ** -0.5)),
            "b1": _w((lambda *s: torch.randn(*s, dtype=torch.bfloat16) * 3.2)(F) * 0.01),
            "w2": _w((lambda *s: torch.randn(*s, dtype=torch.bfloat16) * 0.05)(F, D) * (F ** -0.5)),
            "b2": _w((lambda *s: torch.randn(*s, dtype=torch.bfloat16) * 0.1)(D) * 0.01),
        }
    _B_in = _B_setup()

    return {
        "A_x": _A_in["x"],
        "A_k_cache": _A_in["k_cache"],
        "A_v_cache": _A_in["v_cache"],
        "A_wq": _A_in["wq"],
        "A_wo": _A_in["wo"],
        "B_x": _B_in["x"],
        "B_w1": _B_in["w1"],
        "B_b1": _B_in["b1"],
        "B_w2": _B_in["w2"],
        "B_b2": _B_in["b2"],
        "gate_w": _w((lambda *s: torch.randn(*s, dtype=torch.bfloat16) * 0.05)(512) * 16.0),
    }

def reference(A_x, A_k_cache, A_v_cache, A_wq, A_wo, B_x, B_w1, B_b1, B_w2, B_b2, gate_w):
    def _A_ref(x, k_cache, v_cache, wq, wo):
        B, Sq, D = x.shape
        Hq, Dh = 32, 128
        Hkv = k_cache.shape[1]
        rep = Hq // Hkv
        q = (lambda x, *d: x.permute(*d))((x @ wq).reshape(B, Sq, Hq, Dh), 0, 2, 1, 3)
        k = (lambda x, n, axis: torch.repeat_interleave(x, n, dim=axis))(k_cache, rep, axis=1)
        v = (lambda x, n, axis: torch.repeat_interleave(x, n, dim=axis))(v_cache, rep, axis=1)
        scores = torch.einsum("bhqd,bhkd->bhqk", q, k) * (Dh ** -0.5)
        p = _softmax(scores, axis=-1)
        o = torch.einsum("bhqk,bhkd->bhqd", p, v)
        return (lambda x, *d: x.permute(*d))(o, 0, 2, 1, 3).reshape(B, Sq, Hq * Dh) @ wo

    def _B_ref(x, w1, b1, w2, b2):
        h = torch.einsum("bsd,df->bsf", x, w1) + b1
        h = _gelu(h)
        return torch.einsum("bsf,fd->bsd", h, w2) + b2

    x = A_x
    g = _sigmoid((x * gate_w).sum(-1, keepdims=True))
    a = _A_ref(x, A_k_cache, A_v_cache, A_wq, A_wo)
    b = _B_ref(x, B_w1, B_b1, B_w2, B_b2)
    return g * a + (1 - g) * b
```

```python
import sys, json, math, struct
KN = "gated_mix__gqa_block_cached__dense_activation_gelu__decode"

HDR = """; Kernarg layout for this problem (112 bytes, ptrs only, base s[0:1]):
"""

def f32(x): return "0x%08x" % struct.unpack("<I", struct.pack("<f", x))[0]

EPOCH = 0
QBUF = 0x1000
OBUF = 0x20000; OSTR = 4224
PBUF = 0x200000
STAMP = 0x400000
WS_USED = 0x500000
L_QS = 0; L_HS = 1024; L_GS = 1280; L_MX = 1296; L_OS = 1344
L_RED = 2048; REDW = 2112
L_WO = 19456
L_W2 = 35840
L_XS = 45056
L_WT = 57344
L_END = L_WT + 3*16384

def gen(kvflags="nt", wflags="nt", w0flags="", stamps=False, codepf=True, spin=1<<16):
    L = []; A = L.append
    def stamp(i):
        if stamps: A(f"s_memrealtime s[{72+2*i}:{73+2*i}]")
    sX, sK, sV, sWQ, sWO, sW1, sB1, sW2, sB2, sGW, sOUT, sWS = 16, 18, 20, 22, 24, 28, 30, 32, 34, 36, 38, 42
    KS, VS, WSR, TS, XSR = 44, 48, 52, 56, 60
    sW, sXI, sR, sB, sRG = 3, 4, 5, 6, 7
    sT0, sT1, sT2, sT3 = 8, 9, 10, 11
    sOFF = 12; sCNT = 13
    sM4 = 64
    sSEL_LO, sSEL_HI = 66, 67
    sC = 68
    vLANE, vKO, vVO, vTAG = 1, 2, 3, 4
    vA, vB, vC = 5, 6, 7
    ONES = 8; P = 12; ACC = 28; S = 28; LQ = 60; Q = 60; T = 64; V0 = 96; K = 128; Z = 224
    def q4(r): return f"v[{r}:{r+3}]"
    def q2(r): return f"v[{r}:{r+1}]"
    def srd(d): return f"s[{d}:{d+3}]"

    stamp(0)
    A("s_cmp_ge_u32 s2, 256")
    A("s_cbranch_scc1 L_end")
    A("s_load_dwordx16 s[16:31], s[0:1], 0")
    A("s_load_dwordx8 s[32:39], s[0:1], 64")
    A("s_load_dwordx4 s[40:43], s[0:1], 96")
    A(f"v_lshrrev_b32 v{vA}, 6, v0")
    A(f"v_and_b32 v{vLANE}, 63, v0")
    A(f"v_readfirstlane_b32 s{sW}, v{vA}")
    A(f"s_and_b32 s{sXI}, s2, 7")
    A(f"s_lshr_b32 s{sR}, s2, 3")
    A(f"s_lshr_b32 s{sB}, s2, 6")
    A(f"s_lshl_b32 s{sT0}, s{sB}, 3")
    A(f"s_add_u32 s{sT0}, s{sT0}, s{sXI}")
    A(f"s_lshl_b32 s{sT0}, s{sT0}, 21")
    A(f"s_and_b32 s{sT1}, s{sR}, 7")
    A(f"s_lshl_b32 s{sT1}, s{sT1}, 18")
    A(f"s_add_u32 s{sT0}, s{sT0}, s{sT1}")
    A(f"s_lshl_b32 s{sT1}, s{sW}, 12")
    A(f"s_add_u32 s{sT0}, s{sT0}, s{sT1}")
    A(f"v_lshlrev_b32 v{vVO}, 4, v{vLANE}")
    A(f"v_bfe_u32 v{vKO}, v{vLANE}, 2, 2")
    A(f"v_lshlrev_b32 v{vKO}, 8, v{vKO}")
    A(f"v_lshrrev_b32 v{vA}, 4, v{vLANE}")
    A(f"v_lshl_add_u32 v{vKO}, v{vA}, 6, v{vKO}")
    A(f"v_and_b32 v{vB}, 3, v{vLANE}")
    A(f"v_lshl_add_u32 v{vKO}, v{vB}, 4, v{vKO}")
    A(f"v_mov_b32 v{vC}, 0")
    A(f"s_mov_b32 s{KS+3}, 0x20000")
    A(f"s_mov_b32 s{VS+3}, 0x20000")
    A(f"s_mov_b32 s{KS+2}, 0x40000")
    A(f"s_mov_b32 s{VS+2}, 0x40000")
    A(f"s_sub_u32 s{KS+2}, s{KS+2}, s{sT1}")
    A(f"s_sub_u32 s{VS+2}, s{VS+2}, s{sT1}")
    A("s_waitcnt lgkmcnt(0)")
    A(f"s_add_u32 s{KS}, s{sK}, s{sT0}")
    A(f"s_addc_u32 s{KS+1}, s{sK+1}, 0")
    A(f"s_add_u32 s{VS}, s{sV}, s{sT0}")
    A(f"s_addc_u32 s{VS+1}, s{sV+1}, 0")
    A(f"global_load_dword v{vTAG}, v{vC}, s[{sWS}:{sWS+1}] sc1")
    A(f"s_mov_b32 s{WSR}, s{sWS}")
    A(f"s_mov_b32 s{WSR+1}, s{sWS+1}")
    A(f"s_mov_b32 s{WSR+2}, {WS_USED}")
    A(f"s_mov_b32 s{WSR+3}, 0x20000")
    A(f"s_lshl_b32 s{sRG}, s{sXI}, 3")
    A(f"s_lshr_b32 s{sT2}, s{sR}, 2")
    A(f"s_add_u32 s{sRG}, s{sRG}, s{sT2}")
    A(f"s_mov_b32 s{sM4}, 0x000f000f")
    A(f"s_mov_b32 s{sM4+1}, 0x000f000f")
    A(f"s_cmp_ge_u32 s{sW}, 4")
    A("s_cbranch_scc1 L_stream")
    A(f"s_cmp_eq_u32 s{sW}, 3")
    A("s_cbranch_scc1 L_gate")
    A(f"s_cmp_eq_u32 s{sW}, 0")
    A("s_cbranch_scc0 L_tw1")
    A(f"s_lshl_b32 s{sT0}, s{sXI}, 10")
    A(f"s_lshl_b32 s{sT1}, s{sR}, 5")
    A(f"s_add_u32 s{sT0}, s{sT0}, s{sT1}")
    A(f"s_add_u32 s{TS}, s{sWQ}, s{sT0}")
    A(f"s_addc_u32 s{TS+1}, s{sWQ+1}, 0")
    A(f"s_sub_u32 s{TS+2}, {512*4096*2}, s{sT0}")
    A(f"s_mov_b32 s{sT2}, 8192")
    A("s_branch L_tile")
    A("L_tw1:")
    A(f"s_mul_i32 s{sT0}, s{sRG}, 56")
    A(f"s_lshl_b32 s{sT1}, s{sW}, 5")
    A(f"s_add_u32 s{sT0}, s{sT0}, s{sT1}")
    A(f"s_sub_u32 s{sT0}, s{sT0}, 32")
    A(f"s_add_u32 s{TS}, s{sW1}, s{sT0}")
    A(f"s_addc_u32 s{TS+1}, s{sW1+1}, 0")
    A(f"s_sub_u32 s{TS+2}, {512*1792*2}, s{sT0}")
    A(f"s_mov_b32 s{sT2}, 3584")
    A("L_tile:")
    A(f"s_mov_b32 s{TS+3}, 0x20000")
    A(f"v_lshrrev_b32 v{vA}, 1, v{vLANE}")
    A(f"v_mul_lo_u32 v{vA}, v{vA}, s{sT2}")
    A(f"v_and_b32 v{vB}, 1, v{vLANE}")
    A(f"v_lshl_add_u32 v{vA}, v{vB}, 4, v{vA}")
    A(f"s_lshl_b32 s{sT2}, s{sT2}, 5")
    A(f"s_lshl_b32 s{sT3}, s{sW}, 14")
    A(f"s_add_u32 s{sT3}, s{sT3}, {L_WT}")
    A(f"s_mov_b32 m0, s{sT3}")
    A(f"s_mov_b32 s{sOFF}, 0")
    for n in range(16):
        A(f"buffer_load_dwordx4 v{vA}, {srd(TS)}, s{sOFF} offen {w0flags} lds")
        if n < 15:
            A(f"s_add_u32 m0, m0, 1024")
            A(f"s_add_u32 s{sOFF}, s{sOFF}, s{sT2}")
    A(f"s_mov_b32 s{XSR}, s{sX}")
    A(f"s_mov_b32 s{XSR+1}, s{sX+1}")
    A(f"s_mov_b32 s{XSR+2}, 4096")
    A(f"s_mov_b32 s{XSR+3}, 0x20000")
    A(f"s_lshl_b32 s{sT1}, s{sW}, 12")
    A(f"s_add_u32 s{sT1}, s{sT1}, {L_XS}")
    A(f"s_mov_b32 m0, s{sT1}")
    A("s_nop 0")
    for n in range(4):
        A(f"buffer_load_dwordx4 v{vVO}, {srd(XSR)}, 0 offen offset:{n*1024} lds")
    A(f"s_mov_b32 s{XSR}, s{sB1}")
    A(f"s_mov_b32 s{XSR+1}, s{sB1+1}")
    A(f"s_mov_b32 s{XSR+2}, 3584")
    A(f"v_lshrrev_b32 v{vB}, 4, v{vLANE}")
    A(f"v_lshlrev_b32 v{vC}, 3, v{vB}")
    A(f"buffer_load_dwordx2 v[20:21], v{vC}, {srd(XSR)}, s{sT0} offen")
    A(f"v_and_b32 v{vA}, 15, v{vLANE}")
    A(f"v_lshlrev_b32 v{vA}, 3, v{vA}")
    A(f"v_lshl_add_u32 v{vA}, v{vB}, 8, v{vA}")
    A(f"v_add_u32 v{vA}, s{sT3}, v{vA}")
    A(f"v_and_b32 v{vC}, 3, v{vLANE}")
    A(f"v_lshlrev_b32 v{vC}, 10, v{vC}")
    A(f"v_lshl_add_u32 v{vC}, v{vB}, 4, v{vC}")
    A(f"v_add_u32 v{vC}, s{sT1}, v{vC}")
    A("s_waitcnt vmcnt(0)")
    D = 24
    for grp in range(4):
        for st in range(4):
            n = grp*4+st; a = T + st*8
            A(f"ds_read_b64_tr_b16 {q2(a)}, v{vA} offset:{n*1024}")
            A(f"ds_read_b64_tr_b16 {q2(a+2)}, v{vA} offset:{n*1024+128}")
            A(f"ds_read_b128 {q4(a+4)}, v{vC} offset:{n*64}")
        for st in range(4):
            n = grp*4+st; a = T + st*8
            A(f"s_waitcnt lgkmcnt({9-3*st})")
            A(f"v_mfma_f32_16x16x32_bf16 {q4(D)}, {q4(a)}, {q4(a+4)}, {'0' if n == 0 else q4(D)}")
    A(f"v_add_u32 v{vTAG}, 1, v{vTAG}")
    A(f"s_cmp_eq_u32 s{sW}, 0")
    A("s_cbranch_scc0 L_hpost")
    A(f"v_and_b32 v{vA}, 3, v{vLANE}")
    A(f"v_lshlrev_b32 v{vA}, 11, v{vA}")
    A(f"v_lshl_add_u32 v{vA}, v{vB}, 4, v{vA}")
    A(f"s_lshl_b32 s{sT0}, s{sXI}, 13")
    A(f"s_lshl_b32 s{sT1}, s{sR}, 6")
    A(f"s_add_u32 s{sT1}, s{sT1}, s{sT0}")
    A(f"s_add_u32 s{sT1}, s{sT1}, {QBUF}")
    A("s_nop 1")
    A(f"v_cvt_pk_bf16_f32 v{T}, v{D}, v{D+1}")
    A(f"v_mov_b32 v{T+1}, v{vTAG}")
    A(f"v_cvt_pk_bf16_f32 v{T+2}, v{D+2}, v{D+3}")
    A(f"v_mov_b32 v{T+3}, v{vTAG}")
    A(f"s_mov_b64 exec, s[{sM4}:{sM4+1}]")
    A(f"buffer_store_dwordx4 {q4(T)}, v{vA}, {srd(WSR)}, s{sT1} offen sc1")
    A("s_mov_b64 exec, -1")
    stamp(1)
    A(f"s_lshl_b32 s{sT1}, s{sB}, 11")
    A(f"s_add_u32 s{sT1}, s{sT1}, s{sT0}")
    A(f"s_add_u32 s{sT1}, s{sT1}, {QBUF}")
    A(f"s_mov_b32 s{sCNT}, {spin}")
    A("L_qpoll:")
    A(f"buffer_load_dwordx4 {q4(T+4)}, v{vVO}, {srd(WSR)}, s{sT1} offen sc1")
    A(f"buffer_load_dwordx4 {q4(T+8)}, v{vVO}, {srd(WSR)}, s{sT1} offen offset:1024 sc1")
    A(f"s_sub_u32 s{sCNT}, s{sCNT}, 1")
    A("s_cbranch_scc1 L_qdone")
    A("s_waitcnt vmcnt(0)")
    for rr in (T+5, T+7, T+9, T+11):
        A(f"v_cmpx_eq_u32 vcc, v{rr}, v{vTAG}")
    A("s_cmp_eq_u64 exec, -1")
    A("s_mov_b64 exec, -1")
    A("s_cbranch_scc0 L_qpoll")
    A("L_qdone:")
    A("s_waitcnt vmcnt(0)")
    A(f"v_lshlrev_b32 v{vA}, 3, v{vLANE}")
    A(f"v_add_u32 v{vA}, {L_QS}, v{vA}")
    A(f"ds_write2_b32 v{vA}, v{T+4}, v{T+6} offset0:0 offset1:1")
    A(f"ds_write2_b32 v{vA}, v{T+8}, v{T+10} offset0:128 offset1:129")
    stamp(2)
    A("s_branch L_stream2")
    A("L_hpost:")
    A("s_nop 4")
    A(f"v_cvt_pk_bf16_f32 v{T}, v{D}, v{D+1}")
    A(f"v_cvt_pk_bf16_f32 v{T+1}, v{D+2}, v{D+3}")
    for i in range(2):
        A(f"v_lshlrev_b32 v{T+2+2*i}, 16, v{T+i}")
        A(f"v_and_b32 v{T+3+2*i}, 0xffff0000, v{T+i}")
        A(f"v_lshlrev_b32 v{T+6+2*i}, 16, v{20+i}")
        A(f"v_and_b32 v{T+7+2*i}, 0xffff0000, v{20+i}")
    for i in range(4):
        A(f"v_add_f32 v{T+2+i}, v{T+2+i}, v{T+6+i}")
    A(f"v_cvt_pk_bf16_f32 v{T}, v{T+2}, v{T+3}")
    A(f"v_cvt_pk_bf16_f32 v{T+1}, v{T+4}, v{T+5}")
    for i in range(2):
        A(f"v_lshlrev_b32 v{T+2+2*i}, 16, v{T+i}")
        A(f"v_and_b32 v{T+3+2*i}, 0xffff0000, v{T+i}")
    k1 = 2*math.sqrt(2/math.pi)*math.log2(math.e)
    A(f"s_mov_b32 s{sT0}, {f32(-k1*0.044715)}")
    A(f"v_mov_b32 v{T+10}, {f32(-k1)}")
    for i in range(4):
        A(f"v_mul_f32 v{T+6+i}, v{T+2+i}, v{T+2+i}")
    for i in range(4):
        A(f"v_fma_f32 v{T+6+i}, v{T+6+i}, s{sT0}, v{T+10}")
    for i in range(4):
        A(f"v_mul_f32 v{T+6+i}, v{T+6+i}, v{T+2+i}")
    for i in range(4):
        A(f"v_exp_f32 v{T+6+i}, v{T+6+i}")
    A("s_nop 0")
    for i in range(4):
        A(f"v_add_f32 v{T+6+i}, 1.0, v{T+6+i}")
    for i in range(4):
        A(f"v_rcp_f32 v{T+6+i}, v{T+6+i}")
    A("s_nop 0")
    for i in range(4):
        A(f"v_mul_f32 v{T+6+i}, v{T+6+i}, v{T+2+i}")
    A(f"v_cvt_pk_bf16_f32 v{T}, v{T+6}, v{T+7}")
    A(f"v_cvt_pk_bf16_f32 v{T+1}, v{T+8}, v{T+9}")
    A(f"s_lshl_b32 s{sT0}, s{sW}, 2")
    A(f"s_sub_u32 s{sT0}, s{sT0}, 4")
    A(f"v_add_u32 v{vA}, s{sT0}, v{vB}")
    A(f"v_cmp_gt_u32 vcc, 7, v{vA}")
    A(f"v_lshlrev_b32 v{vA}, 3, v{vA}")
    A(f"v_and_b32 v{vC}, 3, v{vLANE}")
    A(f"v_cndmask_b32 v{T}, 0, v{T}, vcc")
    A(f"v_cndmask_b32 v{T+1}, 0, v{T+1}, vcc")
    A(f"v_lshl_add_u32 v{vA}, v{vC}, 6, v{vA}")
    A(f"ds_write_b64 v{vA}, {q2(T)} offset:{L_HS}")
    A("s_branch L_stream2")
    A("L_gate:")
    A(f"global_load_dwordx4 {q4(T)}, v{vVO}, s[{sGW}:{sGW+1}]")
    for bb in range(4):
        A(f"global_load_dwordx4 {q4(T+4+4*bb)}, v{vVO}, s[{sX}:{sX+1}] offset:{bb*1024}")
    if codepf:
        A(f"s_getpc_b64 s[{sT0}:{sT0+1}]")
        A("L_pc:")
        A(f"s_add_u32 s{sT0}, s{sT0}, L_stream - L_pc")
        A(f"s_addc_u32 s{sT0+1}, s{sT0+1}, 0")
        A("CODEPF")
    A(f"v_mov_b32 v{vA}, 0xff800000")
    A(f"v_lshlrev_b32 v{vB}, 2, v{vLANE}")
    A(f"v_and_b32 v{vB}, 12, v{vB}")
    A(f"ds_write_b32 v{vB}, v{vA} offset:{L_MX}")
    A("s_waitcnt vmcnt(NCODEPF)" if codepf else "s_waitcnt vmcnt(0)")
    for bb in range(4):
        A(f"v_mov_b32 v{24+bb}, 0")
    for i in range(4):
        for bb in range(4):
            A(f"v_dot2_f32_bf16 v{24+bb}, v{T+i}, v{T+4+4*bb+i}, v{24+bb}")
    A("s_nop 2")
    A("v_permlane32_swap_b32 v24, v26")
    A("v_permlane32_swap_b32 v25, v27")
    A("v_add_f32 v24, v24, v26")
    A("v_add_f32 v25, v25, v27")
    A("s_nop 1")
    A("v_permlane16_swap_b32 v24, v25")
    A("v_add_f32 v24, v24, v25")
    for sh in (8, 4, 2, 1):
        A("s_nop 1")
        A(f"v_add_f32_dpp v24, v24, v24 row_ror:{sh} row_mask:0xf bank_mask:0xf")
    A("v_cvt_pk_bf16_f32 v24, v24, v24")
    A("v_and_b32 v24, 0xffff0000, v24")
    A(f"v_mul_f32 v24, {f32(-math.log2(math.e))}, v24")
    A("v_exp_f32 v24, v24")
    A("s_nop 0")
    A("v_add_f32 v24, 1.0, v24")
    A("v_rcp_f32 v24, v24")
    A("s_nop 0")
    A("v_cvt_pk_bf16_f32 v24, v24, v24")
    A("v_and_b32 v24, 0xffff0000, v24")
    A(f"v_lshrrev_b32 v{vB}, 4, v{vLANE}")
    A(f"v_lshlrev_b32 v{vB}, 2, v{vB}")
    A(f"ds_write_b32 v{vB}, v24 offset:{L_GS}")
    A(f"v_add_u32 v{vTAG}, 1, v{vTAG}")
    A("s_branch L_stream2")
    A("L_stream:")
    A(f"s_mov_b32 s{sT3}, 1")
    A("s_branch L_stream3")
    A("L_stream2:")
    A(f"s_mov_b32 s{sT3}, 0")
    A("L_stream3:")
    def kload(n):
        if n % 4 == 0: A(f"s_mov_b32 s{sOFF}, {(n//4)*32768}")
        A(f"buffer_load_dwordx4 {q4(K+4*n)}, v{vKO}, {srd(KS)}, s{sOFF} offen offset:{(n%4)*1024} {kvflags}")
    def vreg(n):
        m = n//8
        return (V0 if m == 0 else K + 32*(m-1)) + 4*(n % 8)
    def vload(n):
        if n % 4 == 0: A(f"s_mov_b32 s{sOFF}, {(n//4)*32768}")
        A(f"buffer_load_dwordx4 {q4(vreg(n))}, v{vVO}, {srd(VS)}, s{sOFF} offen offset:{(n%4)*1024} {kvflags}")
    for n in range(32): kload(n)
    for n in range(8): vload(n)
    stamp(3)
    A(f"v_and_b32 v{vA}, 3, v{vLANE}")
    A(f"v_lshlrev_b32 v{vB}, 8, v{vA}")
    A(f"v_and_b32 v{vC}, 60, v{vLANE}")
    A(f"v_lshl_add_u32 v{vB}, v{vC}, 2, v{vB}")
    A(f"v_lshlrev_b32 v{vA}, 2, v{vA}")
    for i in range(4): A(f"v_mov_b32 v{ONES+i}, 0x3f803f80")
    A(f"s_mov_b32 s{sSEL_LO}, 0x05040100")
    A(f"s_mov_b32 s{sSEL_HI}, 0x07060302")
    A(f"s_mov_b32 s{sC}, {f32(math.log2(math.e)/math.sqrt(128))}")
    A("s_waitcnt lgkmcnt(0)")
    A("s_barrier")
    A(f"ds_read_b128 {q4(Q)}, v{vB} offset:{L_QS}")
    for G in range(4):
        A("s_waitcnt vmcnt(32) lgkmcnt(0)" if G == 0 else "s_waitcnt vmcnt(32)")
        if G == 0:
            A(f"v_add_u32 v{vTAG}, s{sT3}, v{vTAG}")
        for e in range(8):
            A(f"v_mfma_f32_16x16x32_bf16 {q4(T+4*e)}, {q4(K+32*G+4*e)}, {q4(Q)}, 0")
        if G < 3:
            for e in range(8): vload(8*(G+1)+e)
        else:
            A("s_nop 7")
        for e in range(8):
            d = T+4*e; s = S+8*G+e
            A(f"v_add_f32_dpp v{s}, v{d+1}, v{d} row_shl:4 row_mask:0xf bank_mask:0xf bound_ctrl:0")
        for e in range(8):
            d = T+4*e; s = S+8*G+e
            A(f"v_add_f32_dpp v{s}, v{d+2}, v{s} row_shl:8 row_mask:0xf bank_mask:0xf bound_ctrl:0")
        for e in range(8):
            d = T+4*e; s = S+8*G+e
            A(f"v_add_f32_dpp v{s}, v{d+3}, v{s} row_shl:12 row_mask:0xf bank_mask:0xf bound_ctrl:0")
    stamp(4)
    A(f"s_lshl_b32 s{sT0}, s{sRG}, 16")
    A(f"s_and_b32 s{sT1}, s{sR}, 3")
    A(f"s_lshl_b32 s{sT1}, s{sT1}, 8")
    A(f"s_lshl_b32 s{sT2}, s{sW}, 5")
    A(f"s_add_u32 s{sT1}, s{sT1}, s{sT2}")
    A(f"s_add_u32 s{sT0}, s{sT0}, s{sT1}")
    A(f"s_mov_b32 s{TS}, s{sWO}")
    A(f"s_mov_b32 s{TS+1}, s{sWO+1}")
    A(f"s_mov_b32 s{TS+2}, {4096*512*2}")
    A(f"s_mov_b32 s{TS+3}, 0x20000")
    A(f"v_lshrrev_b32 v{Z}, 1, v{vLANE}")
    A(f"v_lshlrev_b32 v{Z}, 10, v{Z}")
    A(f"v_and_b32 v{Z+1}, 1, v{vLANE}")
    A(f"v_lshl_add_u32 v{Z}, v{Z+1}, 4, v{Z}")
    A(f"s_lshl_b32 s{sT2}, s{sW}, 11")
    A(f"s_add_u32 m0, s{sT2}, {L_WO}")
    A(f"s_mul_i32 s{sT3}, s{sRG}, {28*1024}")
    A(f"buffer_load_dwordx4 v{Z}, {srd(TS)}, s{sT0} offen {wflags} lds")
    A(f"s_add_u32 m0, m0, 1024")
    A(f"s_add_u32 s{sT0}, s{sT0}, 32768")
    A(f"buffer_load_dwordx4 v{Z}, {srd(TS)}, s{sT0} offen {wflags} lds")
    A(f"s_mov_b32 s{XSR}, s{sW2}")
    A(f"s_mov_b32 s{XSR+1}, s{sW2+1}")
    A(f"s_mov_b32 s{XSR+2}, {1792*512*2}")
    A(f"s_mov_b32 s{XSR+3}, 0x20000")
    A(f"s_lshl_b32 s{sT2}, s{sW}, 10")
    A(f"s_add_u32 m0, s{sT2}, {L_W2}")
    A(f"s_add_u32 s{sT3}, s{sT3}, s{sT1}")
    A(f"buffer_load_dwordx4 v{Z}, {srd(XSR)}, s{sT3} offen {wflags} lds")
    sTT, sKF = 14, 15
    A(f"s_lshl_b32 s{sTT}, s{sXI}, 4")
    A(f"s_lshr_b32 s{sT0}, s{sR}, 1")
    A(f"s_add_u32 s{sTT}, s{sTT}, s{sT0}")
    A(f"s_and_b32 s{sKF}, s{sR}, 1")
    A(f"s_lshr_b32 s{sT0}, s{sTT}, 2")
    A(f"s_lshl_b32 s{sT0}, s{sT0}, 5")
    A(f"s_lshl_b32 s{sT1}, s{sKF}, 4")
    A(f"s_add_u32 s{sT0}, s{sT0}, s{sT1}")
    vOO = Z+2
    A(f"v_and_b32 v{vOO}, 3, v{vLANE}")
    A(f"v_lshlrev_b32 v{vOO}, 2, v{vOO}")
    A(f"v_lshrrev_b32 v{Z+1}, 5, v{vLANE}")
    A(f"v_lshl_add_u32 v{vOO}, v{Z+1}, 1, v{vOO}")
    A(f"v_add_u32 v{vOO}, s{sT0}, v{vOO}")
    vB2 = Z+3
    A(f"global_load_ushort v{vB2}, v{vOO}, s[{sB2}:{sB2+1}]")
    NLATE = 4
    A(f"v_max3_f32 v{T}, v{S}, v{S+1}, v{S+2}")
    A(f"v_max3_f32 v{T+1}, v{S+3}, v{S+4}, v{S+5}")
    for i in range(6, 30, 4):
        A(f"v_max3_f32 v{T}, v{T}, v{S+i}, v{S+i+1}")
        A(f"v_max3_f32 v{T+1}, v{T+1}, v{S+i+2}, v{S+i+3}")
    A(f"v_max3_f32 v{T}, v{T}, v{S+30}, v{S+31}")
    A(f"v_max_f32 v{T}, v{T}, v{T+1}")
    A(f"s_mov_b64 exec, s[{sM4}:{sM4+1}]")
    A(f"ds_max_f32 v{vA}, v{T} offset:{L_MX}")
    A("s_mov_b64 exec, -1")
    A("s_waitcnt lgkmcnt(0)")
    A("s_barrier")
    vM = Z+4
    A(f"ds_read_b32 v{vM}, v{vA} offset:{L_MX}")
    vRW = Z+5
    A(f"v_and_b32 v{Z+1}, 3, v{vLANE}")
    A(f"v_mul_u32_u24 v{vRW}, 528, v{Z+1}")
    A(f"v_lshrrev_b32 v{Z+6}, 4, v{vLANE}")
    A(f"v_lshl_add_u32 v{vRW}, v{Z+6}, 7, v{vRW}")
    A(f"s_mul_i32 s{sT0}, s{sW}, {REDW}")
    A(f"s_add_u32 s{sT0}, s{sT0}, {L_RED}")
    A(f"v_add_u32 v{vRW}, s{sT0}, v{vRW}")
    A("s_waitcnt lgkmcnt(0)")
    A(f"v_mul_f32 v{vM}, s{sC}, v{vM}")
    for i in range(32):
        A(f"v_fma_f32 v{S+i}, v{S+i}, s{sC}, -v{vM}")
    for i in range(32):
        A(f"v_exp_f32 v{S+i}, v{S+i}")
    A("s_nop 0")
    for i in range(16):
        A(f"v_cvt_pk_bf16_f32 v{P+i}, v{S+2*i}, v{S+2*i+1}")
    vRR = Z+7
    A(f"v_and_b32 v{vRR}, 31, v{vLANE}")
    A(f"v_lshlrev_b32 v{vRR}, 3, v{vRR}")
    A(f"v_lshrrev_b32 v{Z+1}, 5, v{vLANE}")
    A(f"v_mul_u32_u24 v{Z+1}, {4*REDW}, v{Z+1}")
    A(f"v_add_u32 v{vRR}, v{vRR}, v{Z+1}")
    A(f"s_lshr_b32 s{sT0}, s{sW}, 1")
    A(f"s_mul_i32 s{sT1}, s{sT0}, 528")
    A(f"s_and_b32 s{sT2}, s{sW}, 1")
    A(f"s_lshl_b32 s{sT3}, s{sT2}, 8")
    A(f"s_add_u32 s{sT3}, s{sT3}, s{sT1}")
    A(f"s_add_u32 s{sT3}, s{sT3}, {L_RED}")
    A(f"v_add_u32 v{vRR}, s{sT3}, v{vRR}")
    vRL = Z+8
    A(f"v_and_b32 v{vRL}, 7, v{vLANE}")
    A(f"v_mul_u32_u24 v{vRL}, {REDW}, v{vRL}")
    A(f"s_add_u32 s{sT1}, s{sT1}, {L_RED+512}")
    A(f"v_add_u32 v{vRL}, s{sT1}, v{vRL}")
    vMH = Z+9
    A(f"v_readlane_b32 s{sT1}, v{vM}, s{sT0}")
    vPO = Z+10
    A(f"s_lshl_b32 s{sT3}, s{sW}, 9")
    A(f"v_add_u32 v{vPO}, s{sT3}, v{vVO}")
    A(f"s_lshl_b32 s{sT3}, s{sT0}, 4")
    A(f"s_add_u32 s{sT3}, s{sT3}, 4096")
    A(f"v_writelane_b32 v{vPO}, s{sT3}, 32")
    A(f"v_mov_b32 v{vMH}, s{sT1}")
    sPM = 70
    A(f"s_mov_b32 s{sPM}, -1")
    A(f"s_xor_b32 s{sPM+1}, s{sT2}, 1")
    sOB = 69
    A(f"s_mul_i32 s{sOB}, s{sXI}, {32*OSTR}")
    A(f"s_add_u32 s{sOB}, s{sOB}, {OBUF}")
    sOP = 62
    A(f"s_mul_i32 s{sOP}, s{sR}, {OSTR}")
    vG1, vG2 = Z+11, Z+12
    A(f"v_lshrrev_b32 v{vG2}, 3, v{vLANE}")
    A(f"s_lshl_b32 s{sT3}, s{sT0}, 3")
    A(f"v_add_u32 v{vG2}, s{sT3}, v{vG2}")
    A(f"v_mul_u32_u24 v{vG2}, {OSTR}, v{vG2}")
    A(f"v_and_b32 v{vG1}, 7, v{vLANE}")
    A(f"v_lshl_add_u32 v{vG1}, v{vG1}, 4, v{vG2}")
    A(f"s_lshr_b32 s{sT3}, s{sR}, 2")
    A(f"s_lshl_b32 s{sT3}, s{sT3}, 9")
    A(f"s_lshl_b32 s{sT1}, s{sT2}, 8")
    A(f"s_add_u32 s{sT3}, s{sT3}, s{sT1}")
    A(f"v_add_u32 v{vG1}, s{sT3}, v{vG1}")
    A(f"s_lshl_b32 s{sT3}, s{sB}, 4")
    A(f"s_add_u32 s{sT3}, s{sT3}, 4096")
    A(f"v_add_u32 v{vG2}, s{sT3}, v{vG2}")
    vOW = Z+13
    A(f"v_and_b32 v{vOW}, 7, v{vLANE}")
    A(f"v_lshlrev_b32 v{vOW}, 2, v{vOW}")
    A(f"v_and_b32 v{Z+1}, 32, v{vLANE}")
    A(f"v_add_u32 v{vOW}, v{vOW}, v{Z+1}")
    A(f"s_lshl_b32 s{sT3}, s{sW}, 6")
    A(f"v_add_u32 v{vOW}, s{sT3}, v{vOW}")
    vOR = Z+14
    vHR = Z+15
    A(f"v_lshlrev_b32 v{vHR}, 4, v{Z+6}")
    A(f"v_lshl_add_u32 v{vOR}, v{vA}, 5, v{vHR}")
    A(f"v_lshl_add_u32 v{vHR}, v{vA}, 4, v{vHR}")
    vTO = Z+16
    vT2 = Z+17
    A(f"v_bfe_u32 v{vTO}, v{vLANE}, 2, 2")
    A(f"v_lshlrev_b32 v{vTO}, 8, v{vTO}")
    A(f"v_lshl_add_u32 v{vTO}, v{Z+6}, 6, v{vTO}")
    A(f"v_lshl_add_u32 v{vTO}, v{vA}, 1, v{vTO}")
    A(f"s_lshl_b32 s{sT3}, s{sW}, 11")
    A(f"v_add_u32 v{vTO}, s{sT3}, v{vTO}")
    A(f"v_and_b32 v{vT2}, 15, v{vLANE}")
    A(f"v_lshlrev_b32 v{vT2}, 3, v{vT2}")
    A(f"v_lshl_add_u32 v{vT2}, v{Z+6}, 8, v{vT2}")
    A(f"s_lshl_b32 s{sT3}, s{sW}, 10")
    A(f"v_add_u32 v{vT2}, s{sT3}, v{vT2}")
    vP2 = Z+18
    A(f"v_lshlrev_b32 v{vP2}, 5, v{vA}")
    A(f"v_lshl_add_u32 v{vP2}, v{Z+6}, 5, v{vP2}")
    A(f"v_and_b32 v{Z+1}, 4, v{vLANE}")
    A(f"v_lshl_add_u32 v{vP2}, v{Z+1}, 2, v{vP2}")
    A(f"s_lshl_b32 s{sT3}, s{sW}, 9")
    A(f"v_add_u32 v{vP2}, s{sT3}, v{vP2}")
    sPB = 63
    A(f"s_lshl_b32 s{sPB}, s{sRG}, 2")
    A(f"s_and_b32 s{sT3}, s{sR}, 3")
    A(f"s_add_u32 s{sPB}, s{sPB}, s{sT3}")
    A(f"s_lshl_b32 s{sPB}, s{sPB}, 12")
    A(f"s_add_u32 s{sPB}, s{sPB}, {PBUF}")
    A(f"s_add_u32 s{sOP}, s{sOP}, s{sOB}")
    for m in range(4):
        base = vreg(8*m)
        for p_ in range(4):
            A(f"s_waitcnt vmcnt({(3-m)*8 + (3-p_)*2 + NLATE})")
            for c2 in range(4):
                a = base + 8*p_ + c2; b_ = a + 4
                A(f"v_perm_b32 v{T+8*c2+p_}, v{b_}, v{a}, s{sSEL_LO}")
                A(f"v_perm_b32 v{T+8*c2+4+p_}, v{b_}, v{a}, s{sSEL_HI}")
        A(f"v_mfma_f32_16x16x32_bf16 {q4(LQ)}, {q4(ONES)}, {q4(P+4*m)}, {'0' if m == 0 else q4(LQ)}")
        A("s_nop 0")
        for c in range(8):
            A(f"v_mfma_f32_16x16x32_bf16 {q4(ACC+4*c)}, {q4(T+4*c)}, {q4(P+4*m)}, {'0' if m == 0 else q4(ACC+4*c)}")
    stamp(5)
    A(f"s_mov_b64 exec, s[{sM4}:{sM4+1}]")
    A(f"ds_write_b32 v{vRW}, v{LQ} offset:512") if False else None
    A("s_nop 0")
    for c in range(8):
        A(f"ds_write_b128 v{vRW}, {q4(ACC+4*c)} offset:{16*c}")
    A("s_mov_b64 exec, 15")
    A(f"ds_write_b32 v{vRW}, v{LQ} offset:512")
    A("s_mov_b64 exec, -1")
    A("s_waitcnt lgkmcnt(0)")
    A("s_barrier")
    for k in range(4):
        A(f"ds_read_b64 {q2(T+2*k)}, v{vRR} offset:{k*REDW}")
    A(f"ds_read_b32 v{T+8}, v{vRL}")
    A("s_waitcnt lgkmcnt(3)")
    A(f"v_add_f32 v{T}, v{T}, v{T+2}")
    A(f"v_add_f32 v{T+1}, v{T+1}, v{T+3}")
    A("s_waitcnt lgkmcnt(1)")
    A(f"v_add_f32 v{T+4}, v{T+4}, v{T+6}")
    A(f"v_add_f32 v{T+5}, v{T+5}, v{T+7}")
    A(f"v_add_f32 v{T}, v{T}, v{T+4}")
    A(f"v_add_f32 v{T+2}, v{T+1}, v{T+5}")
    A(f"v_mov_b32 v{T+4}, v{T}")
    A(f"v_mov_b32 v{T+5}, v{T+2}")
    A("s_waitcnt lgkmcnt(0)")
    A(f"v_add_f32_dpp v{T+8}, v{T+8}, v{T+8} quad_perm:[1,0,3,2] row_mask:0xf bank_mask:0xf")
    A(f"v_permlane32_swap_b32 v{T}, v{T+4}")
    A(f"v_permlane32_swap_b32 v{T+2}, v{T+5}")
    A(f"v_add_f32_dpp v{T+8}, v{T+8}, v{T+8} quad_perm:[2,3,0,1] row_mask:0xf bank_mask:0xf")
    A(f"v_add_f32 v{T}, v{T}, v{T+4}")
    A(f"v_add_f32 v{T+2}, v{T+2}, v{T+5}")
    A(f"v_add_f32_dpp v{T+8}, v{T+8}, v{T+8} row_half_mirror row_mask:0xf bank_mask:0xf")
    A(f"v_mov_b32 v{T+1}, v{vTAG}")
    A(f"v_mov_b32 v{T+3}, v{vTAG}")
    A("s_mov_b32 exec_lo, 0")
    A(f"v_mov_b32 v{T}, v{vMH}")
    A(f"v_mov_b32 v{T+2}, v{T+8}")
    A(f"s_mov_b64 exec, s[{sPM}:{sPM+1}]")
    A(f"buffer_store_dwordx4 {q4(T)}, v{vPO}, {srd(WSR)}, s{sOP} offen sc1")
    A("s_mov_b64 exec, -1")
    stamp(6)
    WA = ACC
    A("s_waitcnt vmcnt(1)")
    A(f"ds_read_b64_tr_b16 {q2(WA+8)}, v{vT2} offset:{L_W2}")
    A(f"ds_read_b64_tr_b16 {q2(WA+10)}, v{vT2} offset:{L_W2+128}")
    A(f"ds_read_b128 {q4(WA+12)}, v{vHR} offset:{L_HS}")
    A(f"ds_read_b32 v{WA+16}, v{vA} offset:{L_GS}")
    for t in range(2):
        for p_ in range(2):
            A(f"ds_read_b64_tr_b16 {q2(WA+4*t+2*p_)}, v{vTO} offset:{L_WO + t*1024 + p_*32}")
    A("s_waitcnt lgkmcnt(4)")
    FF = WA+20
    A(f"v_mfma_f32_16x16x32_bf16 {q4(FF)}, {q4(WA+8)}, {q4(WA+12)}, 0")
    vGG, vOMG = WA+16, WA+17
    A(f"v_sub_f32 v{vOMG}, 1.0, v{vGG}")
    A(f"v_cvt_pk_bf16_f32 v{vOMG}, v{vOMG}, v{vOMG}")
    A(f"v_and_b32 v{vOMG}, 0xffff0000, v{vOMG}")
    A(f"s_mov_b32 s{sCNT}, {spin}")
    G = T+12
    A("L_opoll:")
    A(f"buffer_load_dwordx4 {q4(G)}, v{vG2}, {srd(WSR)}, s{sOB} offen sc1")
    A(f"buffer_load_dwordx4 {q4(G+4)}, v{vG1}, {srd(WSR)}, s{sOB} offen sc1")
    A(f"buffer_load_dwordx4 {q4(G+8)}, v{vG1}, {srd(WSR)}, s{sOB} offen offset:128 sc1")
    A(f"s_sub_u32 s{sCNT}, s{sCNT}, 1")
    A("s_cbranch_scc1 L_odone")
    A("s_waitcnt vmcnt(0)")
    for rr in (G+1, G+3, G+5, G+7, G+9, G+11):
        A(f"v_cmpx_eq_u32 vcc, v{rr}, v{vTAG}")
    A("s_cmp_eq_u64 exec, -1")
    A("s_mov_b64 exec, -1")
    A("s_cbranch_scc0 L_opoll")
    A("L_odone:")
    A("s_waitcnt vmcnt(0)")
    A("s_nop 1")
    stamp(7)
    mm, tt = T, T+1
    A(f"v_max_f32_dpp v{mm}, v{G}, v{G} row_ror:8 row_mask:0xf bank_mask:0xf")
    for i in range(4): A(f"v_mul_f32 v{FF+i}, v{FF+i}, v{vOMG}") if i == 0 else None
    A(f"v_mov_b32 v{tt}, v{mm}")
    A(f"v_mul_f32 v{FF+1}, v{FF+1}, v{vOMG}")
    A(f"v_mul_f32 v{FF+2}, v{FF+2}, v{vOMG}")
    A(f"v_permlane16_swap_b32 v{mm}, v{tt}")
    A(f"v_max_f32 v{mm}, v{mm}, v{tt}")
    A(f"v_mov_b32 v{tt}, v{mm}")
    A(f"v_mul_f32 v{FF+3}, v{FF+3}, v{vOMG}")
    A("s_nop 0")
    A(f"v_permlane32_swap_b32 v{mm}, v{tt}")
    A(f"v_max_f32 v{mm}, v{mm}, v{tt}")
    A(f"v_sub_f32 v{mm}, v{G}, v{mm}")
    A(f"v_exp_f32 v{mm}, v{mm}")
    A("s_nop 0")
    a0, a1, a2, a3, ll = G+4, G+6, G+8, G+10, G+2
    for rr in (ll, a0, a2, a1, a3):
        A(f"v_mul_f32 v{rr}, v{rr}, v{mm}")
    A(f"v_mov_b32 v{tt}, v{ll}")
    A(f"v_permlane32_swap_b32 v{a0}, v{a2}")
    A(f"v_permlane32_swap_b32 v{a1}, v{a3}")
    A(f"v_permlane32_swap_b32 v{ll}, v{tt}")
    A(f"v_add_f32 v{a0}, v{a0}, v{a2}")
    A(f"v_add_f32 v{a1}, v{a1}, v{a3}")
    A(f"v_add_f32 v{ll}, v{ll}, v{tt}")
    A(f"v_mov_b32 v{a2}, v{a0}")
    A(f"v_mov_b32 v{a3}, v{a1}")
    A(f"v_mov_b32 v{tt}, v{ll}")
    A(f"v_permlane16_swap_b32 v{a0}, v{a2}")
    A("s_nop 0")
    A(f"v_permlane16_swap_b32 v{ll}, v{tt}")
    A(f"v_permlane16_swap_b32 v{a1}, v{a3}")
    A(f"v_add_f32 v{ll}, v{ll}, v{tt}")
    A(f"v_add_f32 v{a0}, v{a0}, v{a2}")
    A(f"v_add_f32 v{a1}, v{a1}, v{a3}")
    A(f"v_add_f32_dpp v{ll}, v{ll}, v{ll} row_ror:8 row_mask:0xf bank_mask:0xf")
    A(f"v_add_f32_dpp v{a0}, v{a0}, v{a0} row_ror:8 row_mask:0xf bank_mask:0xf")
    A(f"v_add_f32_dpp v{a1}, v{a1}, v{a1} row_ror:8 row_mask:0xf bank_mask:0xf")
    A(f"v_rcp_f32 v{ll}, v{ll}")
    A("s_nop 0")
    A(f"v_mul_f32 v{a0}, v{a0}, v{ll}")
    A(f"v_mul_f32 v{a1}, v{a1}, v{ll}")
    A(f"v_cvt_pk_bf16_f32 v{a0}, v{a0}, v{a1}")
    A(f"ds_write_b32 v{vOW}, v{a0} offset:{L_OS}")
    A("s_waitcnt lgkmcnt(0)")
    A("s_barrier")
    A(f"ds_read_b128 {q4(T)}, v{vOR} offset:{L_OS}")
    A(f"ds_read_b128 {q4(T+4)}, v{vOR} offset:{L_OS+64}")
    A(f"v_and_b32 v{T+12}, 4, v{vLANE}")
    A(f"v_cmp_ne_u32 vcc, 0, v{T+12}")
    A("s_waitcnt lgkmcnt(1)")
    A(f"v_mfma_f32_16x16x32_bf16 {q4(T+8)}, {q4(WA)}, {q4(T)}, 0")
    A("s_waitcnt lgkmcnt(0)")
    A(f"v_mfma_f32_16x16x32_bf16 {q4(T+8)}, {q4(WA+4)}, {q4(T+4)}, {q4(T+8)}")
    A(f"v_cndmask_b32 v{FF}, v{FF}, v{FF+2}, vcc")
    A(f"v_cndmask_b32 v{FF+1}, v{FF+1}, v{FF+3}, vcc")
    A(f"v_mov_b32 v{T+13}, v{vTAG}")
    A(f"v_mov_b32 v{T+15}, v{vTAG}")
    A("s_mov_b32 s8, 0x00ff00ff")
    A("s_mov_b32 s9, 0x00ff00ff")
    A("s_nop 1")
    A(f"v_cndmask_b32 v{T+8}, v{T+8}, v{T+10}, vcc")
    A(f"v_cndmask_b32 v{T+9}, v{T+9}, v{T+11}, vcc")
    A(f"v_fma_f32 v{T+12}, v{T+8}, v{vGG}, v{FF}")
    A(f"v_fma_f32 v{T+14}, v{T+9}, v{vGG}, v{FF+1}")
    A("s_mov_b64 exec, s[8:9]")
    A(f"buffer_store_dwordx4 {q4(T+12)}, v{vP2}, {srd(WSR)}, s{sPB} offen sc1")
    A("s_mov_b64 exec, -1")
    stamp(8)
    A(f"s_cmp_eq_u32 s{sW}, 0")
    A("s_cbranch_scc0 L_fin")
    vF = Z+19
    A(f"v_lshrrev_b32 v{vF}, 2, v{vLANE}")
    A(f"v_lshlrev_b32 v{vF}, 14, v{vF}")
    A(f"v_lshl_add_u32 v{vF}, v{vA}, 2, v{vF}")
    A(f"s_lshr_b32 s{sT0}, s{sTT}, 5")
    A(f"s_lshl_b32 s{sT0}, s{sT0}, 12")
    A(f"s_and_b32 s{sT1}, s{sTT}, 31")
    A(f"s_lshl_b32 s{sT1}, s{sT1}, 7")
    A(f"s_add_u32 s{sT0}, s{sT0}, s{sT1}")
    A(f"s_lshl_b32 s{sT1}, s{sKF}, 6")
    A(f"s_add_u32 s{sT0}, s{sT0}, s{sT1}")
    A(f"s_add_u32 s{sT0}, s{sT0}, {PBUF}")
    A(f"s_add_u32 s{sT1}, s{sT0}, {262144}")
    A(f"s_add_u32 s{sT2}, s{sT0}, {2*262144}")
    A(f"s_add_u32 s{sT3}, s{sT0}, {3*262144}")
    A(f"s_and_b32 s{sOFF}, s{sTT}, 3")
    A(f"v_lshlrev_b32 v{vB2}, 16, v{vB2}")
    A(f"v_readlane_b32 s{sCNT}, v{vOMG}, s{sOFF}")
    A(f"s_lshl_b32 s{sOFF}, s{sOFF}, 10")
    A(f"v_add_u32 v{vOO}, s{sOFF}, v{vOO}")
    A("s_nop 0")
    A(f"v_mul_f32 v{vB2}, s{sCNT}, v{vB2}")
    A(f"s_mov_b32 s{sCNT}, {spin}")
    H = T+16
    A("L_ppoll:")
    for k in range(4):
        A(f"buffer_load_dwordx4 {q4(H+4*k)}, v{vF}, {srd(WSR)}, s{sT0+k} offen sc1")
    A(f"s_sub_u32 s{sCNT}, s{sCNT}, 1")
    A("s_cbranch_scc1 L_pdone")
    A("s_waitcnt vmcnt(0)")
    for k in range(8):
        A(f"v_cmpx_eq_u32 vcc, v{H+2*k+1}, v{vTAG}")
    A("s_cmp_eq_u64 exec, -1")
    A("s_mov_b64 exec, -1")
    A("s_cbranch_scc0 L_ppoll")
    A("L_pdone:")
    A("s_waitcnt vmcnt(0)")
    stamp(9)
    A(f"v_add_f32 v{H}, v{H}, v{H+4}")
    A(f"v_add_f32 v{H+2}, v{H+2}, v{H+6}")
    A(f"v_add_f32 v{H+8}, v{H+8}, v{H+12}")
    A(f"v_add_f32 v{H+10}, v{H+10}, v{H+14}")
    A(f"v_add_f32 v{H}, v{H}, v{H+8}")
    A(f"v_add_f32 v{H+2}, v{H+2}, v{H+10}")
    A("s_nop 1")
    A(f"v_permlane32_swap_b32 v{H}, v{H+2}")
    A(f"v_add_f32 v{H}, v{H}, v{H+2}")
    A(f"v_mov_b32 v{H+1}, v{H}")
    A("s_nop 1")
    A(f"v_permlane16_swap_b32 v{H}, v{H+1}")
    A(f"v_add_f32 v{H}, v{H}, v{H+1}")
    A("s_nop 1")
    A(f"v_add_f32_dpp v{H}, v{H}, v{H} row_ror:8 row_mask:0xf bank_mask:0xf")
    A("s_nop 1")
    A(f"v_add_f32_dpp v{H}, v{H}, v{H} row_ror:4 row_mask:0xf bank_mask:0xf")
    A(f"v_add_f32 v{H}, v{H}, v{vB2}")
    A(f"v_cvt_pk_bf16_f32 v{H}, v{H}, v{H}")
    A("s_mov_b32 exec_lo, 15")
    A("s_mov_b32 exec_hi, 15")
    A(f"global_store_short v{vOO}, v{H}, s[{sOUT}:{sOUT+1}]")
    A("s_cmp_eq_u32 s2, 0")
    A("s_cbranch_scc0 L_fin")
    A("s_mov_b64 exec, 1")
    A(f"v_mov_b32 v{H+1}, 0")
    A(f"global_store_dword v{H+1}, v{vTAG}, s[{sWS}:{sWS+1}] sc1")
    A("L_fin:")
    if stamps:
        A("s_mov_b64 exec, -1")
        stamp(10)
        A("s_waitcnt lgkmcnt(0)")
        A(f"s_lshl_b32 s8, s2, 3"); A(f"s_add_u32 s8, s8, s{sW}"); A("s_lshl_b32 s8, s8, 7"); A(f"s_add_u32 s8, s8, {STAMP}")
        A("s_getreg_b32 s94, hwreg(HW_REG_XCC_ID)")
        for i in range(24): A(f"v_mov_b32 v{T+i}, s{72+i}")
        A(f"v_mov_b32 v{vA}, 0")
        A("s_mov_b64 exec, 1")
        for i in range(6): A(f"buffer_store_dwordx4 {q4(T+4*i)}, v{vA}, {srd(WSR)}, s8 offen offset:{16*i}")
    A("L_end:")
    L = [l for l in L if l is not None]
    if codepf:
        i0 = L.index("L_stream:")
        nbytes = 8*(len(L) - i0)
        npf = min(8, (nbytes + 1023)//1024)
        pf = []
        for k in range(npf):
            if k == 4:
                pf += [f"s_add_u32 s{sT0}, s{sT0}, 4096", f"s_addc_u32 s{sT0+1}, s{sT0+1}, 0"]
            pf.append(f"global_load_dwordx4 {q4(V0)}, v{vVO}, s[{sT0}:{sT0+1}] offset:{(k%4)*1024}")
        i = L.index("CODEPF"); L[i:i+1] = pf
        L = [l.replace("NCODEPF", str(npf)) for l in L]
    body = "\n".join(("    " + l) if not l.endswith(":") else l for l in L)
    return HDR + f"""; @launch grid=(256,1,1) block=(512,1,1) lds={L_END}
.amdgcn_target "amdgcn-amd-amdhsa--gfx950"
.text
.globl {KN}_kernel
.p2align 8
.type {KN}_kernel,@function
{KN}_kernel:
{body}
    s_endpgm
    .fill 2048, 4, 0xbf800000
.section .rodata,"a"
.p2align 6
.amdhsa_kernel {KN}_kernel
  .amdhsa_next_free_vgpr 256
  .amdhsa_next_free_sgpr 102
  .amdhsa_accum_offset 256
  .amdhsa_group_segment_fixed_size 0
  .amdhsa_kernarg_size 112
  .amdhsa_user_sgpr_count 2
  .amdhsa_user_sgpr_kernarg_segment_ptr 1
  .amdhsa_system_sgpr_workgroup_id_x 1
.end_amdhsa_kernel
"""

if __name__ == "__main__":
    name = sys.argv[1]; kw = json.loads(sys.argv[2]) if len(sys.argv) > 2 else {}
    open(name, "w").write(gen(**kw))
```

```python
import sys, json, math, struct
from gen1 import KN, HDR, f32

GBUF = 0x800
XBUF = 0x1000
QBUF = 0x10000
HBUF = 0x50000
OBUF = 0x80000; OSTR = 4224
PBUF = 0x200000
STAMP = 0x400000
WS_USED = 0x500000
L_QS = 0; L_HS = 1024; L_GS = 1280; L_MX = 1312; L_TG = 1328; L_OS = 1344
L_RED = 2048; REDW = 2112
L_WO = 19456
L_W2 = 35840
L_XS = 44032
L_WT = 46080
L_END = L_WT + 32768
TAGMUL = 0x9E3779B1

def gen(kvflags="nt", wflags="nt", w0flags="nt", stamps=False, codepf=2, spin=1<<16, wpos="beforeV3",
        force="", halves=False, gw=2, pipe2=False, dbgq=False, prio=0, sbar=True):
    L = []; A = L.append
    def stamp(i, q=False):
        if dbgq and i in (1, 7, 9) and not q: return
        if q and not dbgq: return
        if stamps: A(f"s_memrealtime s[{72+2*i}:{73+2*i}]")
    sX, sK, sV, sWQ, sWO, sW1, sB1, sW2, sB2, sGW, sOUT, sWS = 16, 18, 20, 22, 24, 28, 30, 32, 34, 36, 38, 42
    sEP = 40
    sMODE = 41
    KS, VS, WSR, TS = 44, 48, 52, 56
    sH0 = 60
    sW, sXI, sR, sB, sRG = 3, 4, 5, 6, 7
    sT0, sT1, sT2, sT3 = 8, 9, 10, 11
    sOFF = 12; sCNT = 13
    sTT, sKF = 14, 15
    sOP, sPB = 26, 27
    sM4 = 64
    sSEL_LO, sSEL_HI = 66, 67
    sC = 68; sOB = 69; sPM = 70
    vLANE, vKO, vVO, vTAG = 1, 2, 3, 4
    vA, vB, vC = 5, 6, 7
    ONES = 8; P = 12; ACC = 28; S = 28; LQ = 60; Q = 60; T = 64; V0 = 96; K = 128; Z = 224
    KSTEP = 16384 if halves else 32768
    def q4(r): return f"v[{r}:{r+3}]"
    def q2(r): return f"v[{r}:{r+1}]"
    def srd(d): return f"s[{d}:{d+3}]"
    def kload(n):
        if n % 4 == 0: A(f"s_mov_b32 s{sOFF}, {(n//4)*KSTEP}")
        A(f"buffer_load_dwordx4 {q4(K+4*n)}, v{vKO}, {srd(KS)}, s{sOFF} offen offset:{(n%4)*1024} {kvflags}")
    def vreg(n):
        m = n//8
        return (V0 if m == 0 else K + 32*(m-1)) + 4*(n % 8)
    def vload(n):
        if n % 4 == 0: A(f"s_mov_b32 s{sOFF}, {(n//4)*KSTEP}")
        A(f"buffer_load_dwordx4 {q4(vreg(n))}, v{vVO}, {srd(VS)}, s{sOFF} offen offset:{(n%4)*1024} {kvflags}")
    def mktag():
        A(f"v_readfirstlane_b32 s{sEP}, v{vTAG}")
        A(f"s_add_u32 s{sEP}, s{sEP}, 1")
        A(f"s_mul_i32 s{sT0}, s{sEP}, {TAGMUL:#x}")
        A(f"v_mov_b32 v{vTAG}, s{sT0}")
    def tagbytes(r):
        for i in range(4):
            A(f"s_mov_b32 s{sT0}, {0x07060500 + i:#x}")
            A(f"v_perm_b32 v{r+i}, v{r+i}, v{vTAG}, s{sT0}")
    def chkbytes(r):
        for i in range(4):
            A(f"v_cmpx_eq_u32_sdwa vcc, v{r+i}, v{vTAG} src0_sel:BYTE_0 src1_sel:BYTE_{i}")
    def bf16pair_to_f32(dst, src):
        A(f"v_lshlrev_b32 v{dst}, 16, v{src}")
        A(f"v_and_b32 v{dst+1}, 0xffff0000, v{src}")

    stamp(0)
    A("s_cmp_ge_u32 s2, 256")
    A("s_cbranch_scc1 L_end")
    A("s_load_dwordx16 s[16:31], s[0:1], 0")
    A("s_load_dwordx8 s[32:39], s[0:1], 64")
    A("s_load_dwordx2 s[42:43], s[0:1], 104")
    A(f"v_lshrrev_b32 v{vA}, 6, v0")
    A(f"v_and_b32 v{vLANE}, 63, v0")
    A(f"v_readfirstlane_b32 s{sW}, v{vA}")
    A(f"s_and_b32 s{sXI}, s2, 7")
    A(f"s_lshr_b32 s{sR}, s2, 3")
    A(f"s_lshr_b32 s{sB}, s2, 6")
    A(f"s_lshl_b32 s{sT0}, s{sB}, 3")
    A(f"s_add_u32 s{sT0}, s{sT0}, s{sXI}")
    A(f"s_lshl_b32 s{sT0}, s{sT0}, 21")
    A(f"s_and_b32 s{sT1}, s{sR}, 7")
    A(f"s_lshl_b32 s{sT1}, s{sT1}, 18")
    A(f"s_add_u32 s{sT0}, s{sT0}, s{sT1}")
    if halves:
        A(f"s_and_b32 s{sT1}, s{sW}, 3")
        A(f"s_lshl_b32 s{sT1}, s{sT1}, 12")
        A(f"s_lshr_b32 s{sT2}, s{sW}, 2")
        A(f"s_lshl_b32 s{sT2}, s{sT2}, 17")
        A(f"s_add_u32 s{sT1}, s{sT1}, s{sT2}")
    else:
        A(f"s_lshl_b32 s{sT1}, s{sW}, 12")
    A(f"s_add_u32 s{sT0}, s{sT0}, s{sT1}")
    A(f"v_lshlrev_b32 v{vVO}, 4, v{vLANE}")
    A(f"v_bfe_u32 v{vKO}, v{vLANE}, 2, 2")
    A(f"v_lshlrev_b32 v{vKO}, 8, v{vKO}")
    A(f"v_lshrrev_b32 v{vB}, 4, v{vLANE}")
    A(f"v_lshl_add_u32 v{vKO}, v{vB}, 6, v{vKO}")
    A(f"v_and_b32 v{vA}, 3, v{vLANE}")
    A(f"v_lshl_add_u32 v{vKO}, v{vA}, 4, v{vKO}")
    A(f"v_lshlrev_b32 v{vA}, 2, v{vA}")
    A(f"s_mov_b32 s{KS+3}, 0x20000")
    A(f"s_mov_b32 s{VS+3}, 0x20000")
    A(f"s_sub_u32 s{KS+2}, 0x40000, s{sT1}")
    A(f"s_sub_u32 s{VS+2}, 0x40000, s{sT1}")
    A(f"s_mov_b32 s{WSR+2}, {WS_USED}")
    A(f"s_mov_b32 s{WSR+3}, 0x20000")
    A(f"s_lshl_b32 s{sRG}, s{sXI}, 3")
    A(f"s_lshr_b32 s{sT2}, s{sR}, 2")
    A(f"s_add_u32 s{sRG}, s{sRG}, s{sT2}")
    A(f"s_cmp_gt_u32 s{sW}, {max(gw,1)}")
    A("s_waitcnt lgkmcnt(0)")
    A(f"s_mov_b32 s{WSR}, s{sWS}")
    A(f"s_mov_b32 s{WSR+1}, s{sWS+1}")
    A(f"s_cselect_b32 s{sT3}, 1, 0")
    A(f"s_add_u32 s{KS}, s{sK}, s{sT0}")
    A(f"s_addc_u32 s{KS+1}, s{sK+1}, 0")
    A(f"s_add_u32 s{VS}, s{sV}, s{sT0}")
    A(f"s_addc_u32 s{VS+1}, s{sV+1}, 0")
    A(f"s_cmp_eq_u32 s{sT3}, 1")
    A("s_cbranch_scc1 L_plainb" if sbar else "s_cbranch_scc1 L_plain")
    if prio: A(f"s_setprio {prio}")
    A(f"buffer_load_dword v{vTAG}, off, {srd(WSR)}, 0 sc1")
    A(f"s_cmp_eq_u32 s{sW}, {gw}")
    A("s_cbranch_scc1 L_gather")
    sCB, sKQ, sPUB = sTT, sKF, sOP
    A(f"s_cmp_eq_u32 s{sW}, 0")
    A("s_cbranch_scc0 L_taskb")
    A(f"s_mov_b32 s{TS}, s{sWQ}")
    A(f"s_mov_b32 s{TS+1}, s{sWQ+1}")
    A(f"s_mov_b32 s{TS+2}, {512*4096*2}")
    A(f"s_mov_b32 s{sT2}, 8192")
    A(f"s_mov_b32 s{sCB}, s{sRG}")
    A(f"s_and_b32 s{sKQ}, s{sR}, 3")
    A(f"s_lshl_b32 s{sPUB}, s{sKQ}, 14")
    A(f"s_add_u32 s{sPUB}, s{sPUB}, {QBUF}")
    A(f"s_mov_b32 s{sPB}, 16")
    A("s_branch L_task")
    A("L_taskb:")
    A("s_cmp_eq_u32 s2, 1")
    A("s_cbranch_scc1 L_gate")
    A(f"s_lshl_b32 s{sT2}, s{sR}, 2")
    A(f"s_lshr_b32 s{sT3}, s{sXI}, 1")
    A(f"s_add_u32 s{sT2}, s{sT2}, s{sT3}")
    A(f"s_bitcmp1_b32 s2, 0")
    A(f"s_cselect_b32 s{sT2}, 255, s{sT2}")
    A(f"s_cmp_ge_u32 s{sT2}, 112")
    A("s_cbranch_scc1 L_cpf")
    A(f"s_lshr_b32 s{sCB}, s{sT2}, 2")
    A(f"s_and_b32 s{sKQ}, s{sT2}, 3")
    A(f"s_mov_b32 s{TS}, s{sW1}")
    A(f"s_mov_b32 s{TS+1}, s{sW1+1}")
    A(f"s_mov_b32 s{TS+2}, {512*1792*2}")
    A(f"s_mov_b32 s{sT2}, 3584")
    A(f"s_lshl_b32 s{sPUB}, s{sKQ}, 13")
    A(f"s_add_u32 s{sPUB}, s{sPUB}, {HBUF}")
    A(f"s_mov_b32 s{sPB}, 15")
    A("L_task:")
    A(f"s_mov_b32 s{TS+3}, 0x20000")
    A(f"s_lshl_b32 s{sOFF}, s{sKQ}, 7")
    A(f"s_mul_i32 s{sOFF}, s{sOFF}, s{sT2}")
    A(f"s_lshl_b32 s{sT0}, s{sCB}, 7")
    A(f"s_add_u32 s{sOFF}, s{sOFF}, s{sT0}")
    A(f"v_lshrrev_b32 v{vC}, 3, v{vLANE}")
    A(f"v_mul_lo_u32 v{vC}, v{vC}, s{sT2}")
    A(f"v_and_b32 v{T}, 7, v{vLANE}")
    A(f"v_lshl_add_u32 v{vC}, v{T}, 4, v{vC}")
    A(f"s_lshl_b32 s{sT2}, s{sT2}, 3")
    A(f"s_lshl_b32 s{sT1}, s{sW}, 14")
    A(f"s_add_u32 s{sT1}, s{sT1}, {L_WT}")
    A(f"s_mov_b32 m0, s{sT1}")
    A(f"v_and_b32 v{T}, 15, v{vLANE}")
    for n in range(16):
        A(f"buffer_load_dwordx4 v{vC}, {srd(TS)}, s{sOFF} offen {w0flags} lds")
        if n < 15:
            A(f"s_add_u32 m0, m0, 1024")
            A(f"s_add_u32 s{sOFF}, s{sOFF}, s{sT2}")
    A(f"s_mov_b32 s{TS}, s{sX}")
    A(f"s_mov_b32 s{TS+1}, s{sX+1}")
    A(f"s_mov_b32 s{TS+2}, 4096")
    A(f"v_lshlrev_b32 v{T}, 4, v{T}")
    A(f"v_lshl_add_u32 v{T}, v{vB}, 10, v{T}")
    A(f"s_lshl_b32 s{sT3}, s{sW}, 10")
    A(f"s_add_u32 s{sT3}, s{sT3}, {L_XS}")
    A(f"s_mov_b32 m0, s{sT3}")
    A(f"s_lshl_b32 s{sOFF}, s{sKQ}, 8")
    A(f"buffer_load_dwordx4 v{T}, {srd(TS)}, s{sOFF} offen lds")
    stamp(1, True)
    if sbar: A("s_barrier")
    A(f"v_bfe_u32 v{P}, v{vLANE}, 2, 2")
    A(f"v_lshlrev_b32 v{vC}, 7, v{P}")
    A(f"v_lshl_add_u32 v{vC}, v{vB}, 10, v{vC}")
    A(f"v_lshl_add_u32 v{vC}, v{vA}, 1, v{vC}")
    A(f"v_add_u32 v{vC}, s{sT1}, v{vC}")
    A(f"v_lshlrev_b32 v{P+1}, 6, v{vA}")
    A(f"v_lshl_add_u32 v{P+1}, v{vB}, 4, v{P+1}")
    A(f"v_add_u32 v{P+1}, s{sT3}, v{P+1}")
    A(f"v_lshrrev_b32 v{P+2}, 2, v{vA}")
    A(f"v_lshlrev_b32 v{P+2}, s{sPB}, v{P+2}")
    A(f"v_lshl_add_u32 v{P+2}, v{P}, 6, v{P+2}")
    A(f"v_lshl_add_u32 v{P+2}, v{vB}, 4, v{P+2}")
    A(f"s_lshl_b32 s{sT0}, s{sCB}, 8")
    A(f"s_add_u32 s{sPUB}, s{sPUB}, s{sT0}")
    A(f"v_and_b32 v{P+3}, 1, v{P}")
    A(f"v_cmp_ne_u32 s[{sT2}:{sT2+1}], 0, v{P+3}")
    A(f"v_cmp_lt_u32 vcc, 1, v{P}")
    A("s_waitcnt vmcnt(0)")
    stamp(9, True)
    XO = V0; D = V0+16
    for t in range(4): A(f"ds_read_b128 {q4(XO+4*t)}, v{P+1} offset:{64*t}")
    def trs(t):
        for ct in range(4):
            a = T + 16*(t % 2) + 4*ct
            A(f"ds_read_b64_tr_b16 {q2(a)}, v{vC} offset:{t*4096 + ct*32}")
            A(f"ds_read_b64_tr_b16 {q2(a+2)}, v{vC} offset:{t*4096 + 512 + ct*32}")
    trs(0)
    mktag()
    for t in range(4):
        A("s_waitcnt lgkmcnt(0)")
        if t < 3: trs(t+1)
        for ct in range(4):
            A(f"v_mfma_f32_16x16x32_bf16 {q4(D+4*ct)}, {q4(T+16*(t%2)+4*ct)}, {q4(XO+4*t)}, {'0' if t == 0 else q4(D+4*ct)}")
    A("s_getreg_b32 s12, hwreg(HW_REG_XCC_ID, 0, 4)")
    A("s_lshl_b32 s12, s12, 8")
    for i in range(4): A(f"v_mov_b32 v{T+8+i}, s12")
    A("s_nop 0")
    for i in range(4): A(f"v_cndmask_b32 v{T+i}, v{D+i}, v{D+4+i}, s[{sT2}:{sT2+1}]")
    for i in range(4): A(f"v_cndmask_b32 v{T+4+i}, v{D+8+i}, v{D+12+i}, s[{sT2}:{sT2+1}]")
    for i in range(4): A(f"v_cndmask_b32 v{T+i}, v{T+i}, v{T+4+i}, vcc")
    tagbytes(T)
    A(f"buffer_store_dwordx4 {q4(T)}, v{P+2}, {srd(WSR)}, s{sPUB} offen sc1")
    stamp(7, True)
    A(f"s_cmp_eq_u32 s{sW}, 0")
    A("s_cbranch_scc0 L_plain")
    tagbytes(T+8)
    A(f"s_lshl_b32 s{sT0}, s{sXI}, 5")
    A(f"s_add_u32 s{sT0}, s{sT0}, s{sR}")
    A(f"s_lshl_b32 s{sT0}, s{sT0}, 4")
    A(f"s_add_u32 s{sT0}, s{sT0}, {XBUF}")
    A("s_mov_b64 exec, 1")
    A(f"buffer_store_dwordx4 {q4(T+8)}, off, {srd(WSR)}, s{sT0} sc1")
    A("s_mov_b64 exec, -1")
    A("s_branch L_plain")
    A("L_gate:")
    if sbar: A("s_barrier")
    A(f"global_load_dwordx4 {q4(T)}, v{vVO}, s[{sGW}:{sGW+1}]")
    for bb in range(4):
        A(f"global_load_dwordx4 {q4(T+4+4*bb)}, v{vVO}, s[{sX}:{sX+1}] offset:{bb*1024}")
    for bb in range(4): A(f"v_mov_b32 v{24+bb}, 0")
    A("s_waitcnt vmcnt(0)")
    mktag()
    for i in range(4):
        for bb in range(4):
            A(f"v_dot2_f32_bf16 v{24+bb}, v{T+i}, v{T+4+4*bb+i}, v{24+bb}")
    A("s_nop 2")
    A("v_permlane32_swap_b32 v24, v26")
    A("v_permlane32_swap_b32 v25, v27")
    A("v_add_f32 v24, v24, v26")
    A("v_add_f32 v25, v25, v27")
    A("s_nop 1")
    A("v_permlane16_swap_b32 v24, v25")
    A("v_add_f32 v24, v24, v25")
    for sh in (8, 4, 2, 1):
        A("s_nop 1")
        A(f"v_add_f32_dpp v24, v24, v24 row_ror:{sh} row_mask:0xf bank_mask:0xf")
    A("v_cvt_pk_bf16_f32 v24, v24, v24")
    A("v_and_b32 v24, 0xffff0000, v24")
    A(f"v_mul_f32 v24, {f32(-math.log2(math.e))}, v24")
    A("v_exp_f32 v24, v24")
    A("s_nop 0")
    A("v_add_f32 v24, 1.0, v24")
    A("v_rcp_f32 v24, v24")
    A("s_nop 0")
    A("v_cvt_pk_bf16_f32 v24, v24, v24")
    A("v_and_b32 v24, 0xffff0000, v24")
    A("v_sub_f32 v25, 1.0, v24")
    A("v_cvt_pk_bf16_f32 v25, v25, v25")
    A("v_and_b32 v25, 0xffff0000, v25")
    A("v_mov_b32 v26, 0")
    A("v_mov_b32 v27, 0")
    tagbytes(24)
    A(f"v_lshlrev_b32 v{vC}, 4, v{vB}")
    A("s_mov_b32 exec_lo, 0x00010001")
    A("s_mov_b32 exec_hi, 0x00010001")
    A(f"buffer_store_dwordx4 v[24:27], v{vC}, {srd(WSR)}, 0 offen offset:{GBUF} sc1")
    A("s_mov_b64 exec, -1")
    A("s_branch L_plain")
    A("L_gather:")
    if sbar: A("s_barrier")
    for n in range(32): kload(n)
    HH = 28; XT = 36; B1 = 40; GA = 42
    A(f"v_and_b32 v{GA}, 7, v{vLANE}")
    A(f"v_bfe_u32 v{GA+1}, v{vLANE}, 3, 2")
    A(f"v_lshrrev_b32 v{GA+2}, 5, v{vLANE}")
    A(f"v_lshlrev_b32 v{GA+3}, 15, v{GA+1}")
    A(f"v_lshl_add_u32 v{GA+3}, v{GA+2}, 13, v{GA+3}")
    A(f"v_lshl_add_u32 v{GA+3}, v{GA}, 4, v{GA+3}")
    A(f"s_mul_i32 s{sT0}, s{sRG}, 112")
    A(f"s_add_u32 s{sT0}, s{sT0}, {HBUF}")
    A(f"v_add_u32 v{GA+3}, s{sT0}, v{GA+3}")
    A(f"v_add_u32 v{GA+4}, 16384, v{GA+3}")
    A(f"v_cmp_eq_u32 s[{sH0}:{sH0+1}], 7, v{GA}")
    A(f"v_lshlrev_b32 v{GA+5}, 4, v{GA+1}")
    A(f"v_add_u32 v{GA+5}, {GBUF}, v{GA+5}")
    A(f"v_cndmask_b32 v{GA+3}, v{GA+3}, v{GA+5}, s[{sH0}:{sH0+1}]")
    A(f"v_cndmask_b32 v{GA+4}, v{GA+4}, v{GA+5}, s[{sH0}:{sH0+1}]")
    A(f"v_and_b32 v{GA+5}, 0x1f0, v{vVO}")
    A(f"s_lshl_b32 s{sH0+2}, s{sXI}, 9")
    A(f"s_add_u32 s{sH0+2}, s{sH0+2}, {XBUF}")
    A(f"s_mov_b32 s{TS}, s{sB1}")
    A(f"s_mov_b32 s{TS+1}, s{sB1+1}")
    A(f"s_mov_b32 s{TS+2}, 3584")
    A(f"s_mov_b32 s{TS+3}, 0x20000")
    A(f"v_lshlrev_b32 v{GA+6}, 3, v{GA}")
    A(f"s_mul_i32 s{sT0}, s{sRG}, 56")
    A(f"buffer_load_dwordx2 {q2(B1)}, v{GA+6}, {srd(TS)}, s{sT0} offen")
    A(f"s_lshl_b32 s{sT0}, s{sB}, 16")
    A(f"s_lshl_b32 s{sT1}, s{sXI}, 11")
    A(f"s_add_u32 s{sT0}, s{sT0}, s{sT1}")
    A(f"s_add_u32 s{sTT}, s{sT0}, {QBUF}")
    A(f"s_add_u32 s{sKF}, s{sTT}, 16384")
    A(f"s_add_u32 s{sOP}, s{sTT}, 32768")
    A(f"s_add_u32 s{sPB}, s{sTT}, 49152")
    def gloads():
        for kq, so in enumerate((sTT, sKF, sOP, sPB)):
            for hf in range(2):
                A(f"buffer_load_dwordx4 {q4(T+8*kq+4*hf)}, v{vVO}, {srd(WSR)}, s{so} offen offset:{1024*hf} sc1")
        A(f"buffer_load_dwordx4 {q4(HH)}, v{GA+3}, {srd(WSR)}, 0 offen sc1")
        A(f"buffer_load_dwordx4 {q4(HH+4)}, v{GA+4}, {srd(WSR)}, 0 offen sc1")
        A(f"buffer_load_dwordx4 {q4(XT)}, v{GA+5}, {srd(WSR)}, s{sH0+2} offen sc1")
    stamp(1, True)
    gloads()
    stamp(9, True)
    for n in range(8): vload(n)
    A(f"v_mov_b32 v{GA+7}, 0xff800000")
    A(f"ds_write_b32 v{vA}, v{GA+7} offset:{L_MX}")
    A(f"s_mov_b32 s{sCNT}, {spin}")
    A("s_waitcnt vmcnt(8)")
    stamp(7, True)
    mktag()
    A("s_branch L_qchk")
    A("L_qpoll:")
    gloads()
    A(f"s_sub_u32 s{sCNT}, s{sCNT}, 1")
    A("s_waitcnt vmcnt(0)")
    A("s_cbranch_scc1 L_qdone")
    A("L_qchk:")
    A(f"s_mov_b64 s[{sT2}:{sT2+1}], exec")
    for u_ in list(range(T, T+32, 4)) + [HH, HH+4, XT]: chkbytes(u_)
    A(f"s_andn2_b64 exec, s[{sT2}:{sT2+1}], exec")
    A("s_cbranch_execnz L_qpoll")
    A("L_qdone:")
    A("s_mov_b64 exec, -1")
    stamp(2)
    for i in range(8): A(f"v_add_f32 v{T+i}, v{T+i}, v{T+8+i}")
    for i in range(8): A(f"v_add_f32 v{T+16+i}, v{T+16+i}, v{T+24+i}")
    for i in range(4): A(f"v_add_f32 v{HH+i}, v{HH+i}, v{HH+4+i}")
    for i in range(8): A(f"v_add_f32 v{T+i}, v{T+i}, v{T+16+i}")
    for i in range(4): A(f"v_mov_b32 v{HH+4+i}, v{HH+i}")
    for i in range(4): A(f"v_cvt_pk_bf16_f32 v{T+8+i}, v{T+2*i}, v{T+2*i+1}")
    A(f"v_lshlrev_b32 v{GA+6}, 3, v{vLANE}")
    for i in range(4): A(f"v_permlane32_swap_b32 v{HH+i}, v{HH+4+i}")
    A(f"ds_write_b64 v{GA+6}, {q2(T+8)} offset:{L_QS}")
    A(f"ds_write_b64 v{GA+6}, {q2(T+10)} offset:{L_QS+512}")
    for i in range(4): A(f"v_add_f32 v{HH+i}, v{HH+i}, v{HH+4+i}")
    A("s_getreg_b32 s12, hwreg(HW_REG_XCC_ID, 0, 4)")
    A(f"v_lshrrev_b32 v{XT}, 8, v{XT}")
    A(f"v_cmp_eq_u32 vcc, s12, v{XT}")
    A(f"v_mul_f32 v{T}, 0.25, v{HH}") if False else None
    A(f"v_mul_f32 v{T}, 0x3e800000, v{HH}")
    A(f"v_mul_f32 v{T+1}, 0x3e800000, v{HH+1}")
    A(f"v_and_b32 v{T}, 0xffff0000, v{T}")
    A(f"v_and_b32 v{T+1}, 0xffff0000, v{T+1}")
    A("s_cmp_eq_u64 vcc, -1")
    A(f"s_cselect_b32 s{sT0}, 1, 0")
    if force == "global": A(f"s_mov_b32 s{sT0}, 0")
    A(f"v_mov_b32 v{XT+1}, s{sT0}")
    A(f"v_mov_b32 v{XT}, v{vTAG}")
    A(f"v_mov_b32 v{XT+2}, s{sEP}")
    A(f"v_mov_b32 v{XT+3}, 0")
    A(f"ds_write_b96 v{XT+3}, v[{XT}:{XT+2}] offset:{L_TG}")
    A(f"v_lshlrev_b32 v{GA+1}, 3, v{GA+1}")
    A(f"s_mov_b64 exec, s[{sH0}:{sH0+1}]")
    A(f"ds_write_b64 v{GA+1}, {q2(T)} offset:{L_GS}")
    A("s_mov_b64 exec, -1")
    U = T+12
    A(f"v_cvt_pk_bf16_f32 v{U}, v{HH}, v{HH+1}")
    A(f"v_cvt_pk_bf16_f32 v{U+1}, v{HH+2}, v{HH+3}")
    for i in range(2):
        bf16pair_to_f32(T+2*i, U+i); bf16pair_to_f32(T+4+2*i, B1+i)
    for i in range(4): A(f"v_add_f32 v{T+i}, v{T+i}, v{T+4+i}")
    A(f"v_cvt_pk_bf16_f32 v{U}, v{T}, v{T+1}")
    A(f"v_cvt_pk_bf16_f32 v{U+1}, v{T+2}, v{T+3}")
    for i in range(2): bf16pair_to_f32(T+2*i, U+i)
    k1 = 2*math.sqrt(2/math.pi)*math.log2(math.e)
    A(f"s_mov_b32 s{sT0}, {f32(-k1*0.044715)}")
    A(f"v_mov_b32 v{T+8}, {f32(-k1)}")
    for i in range(4): A(f"v_mul_f32 v{T+4+i}, v{T+i}, v{T+i}")
    for i in range(4): A(f"v_fma_f32 v{T+4+i}, v{T+4+i}, s{sT0}, v{T+8}")
    for i in range(4): A(f"v_mul_f32 v{T+4+i}, v{T+4+i}, v{T+i}")
    for i in range(4): A(f"v_exp_f32 v{T+4+i}, v{T+4+i}")
    A("s_nop 0")
    for i in range(4): A(f"v_add_f32 v{T+4+i}, 1.0, v{T+4+i}")
    for i in range(4): A(f"v_rcp_f32 v{T+4+i}, v{T+4+i}")
    A("s_nop 0")
    for i in range(4): A(f"v_mul_f32 v{T+4+i}, v{T+4+i}, v{T+i}")
    A(f"v_cvt_pk_bf16_f32 v{U}, v{T+4}, v{T+5}")
    A(f"v_cvt_pk_bf16_f32 v{U+1}, v{T+6}, v{T+7}")
    A(f"v_and_b32 v{GA+6}, 0xf8, v{GA+6}")
    A(f"v_cndmask_b32 v{U}, v{U}, 0, s[{sH0}:{sH0+1}]")
    A(f"v_cndmask_b32 v{U+1}, v{U+1}, 0, s[{sH0}:{sH0+1}]")
    A(f"ds_write_b64 v{GA+6}, {q2(U)} offset:{L_HS}")
    A("s_branch L_issued")
    A("L_cpf:")
    if codepf:
        A(f"s_cmp_ge_u32 s{sR}, {32-codepf}")
        A("s_cbranch_scc0 L_plainb" if sbar else "s_cbranch_scc0 L_plain")
        A(f"s_getpc_b64 s[{sT0}:{sT0+1}]")
        A("CODEPF")
    if sbar:
        A("L_plainb:")
        A("s_barrier")
    A("L_plain:")
    for n in range(32): kload(n)
    for n in range(8): vload(n)
    A("L_issued:")
    if prio: A("s_setprio 0")
    stamp(3)
    A(f"v_lshlrev_b32 v{vB}, 6, v{vA}")
    A(f"v_and_b32 v{vC}, 60, v{vLANE}")
    A(f"v_lshl_add_u32 v{vB}, v{vC}, 2, v{vB}")
    for i in range(4): A(f"v_mov_b32 v{ONES+i}, 0x3f803f80")
    A(f"s_mov_b32 s{sSEL_LO}, 0x05040100")
    A(f"s_mov_b32 s{sSEL_HI}, 0x07060302")
    A(f"s_mov_b32 s{sC}, {f32(math.log2(math.e)/math.sqrt(128))}")
    A(f"s_mov_b32 s{sM4}, 0x000f000f")
    A(f"s_mov_b32 s{sM4+1}, 0x000f000f")
    A(f"v_mov_b32 v{vC}, 0")
    A("s_waitcnt lgkmcnt(0)")
    A("s_barrier")
    A(f"ds_read_b128 {q4(Q)}, v{vB} offset:{L_QS}")
    A(f"ds_read_b96 v[{P}:{P+2}], v{vC} offset:{L_TG}")
    for G in range(4):
        A(f"s_waitcnt vmcnt({(3-G)*8+8}) lgkmcnt(0)")
        for e in range(8):
            A(f"v_mfma_f32_16x16x32_bf16 {q4(T+4*e)}, {q4(K+32*G+4*e)}, {q4(Q)}, 0")
        if G == 0:
            A(f"v_mov_b32 v{vTAG}, v{P}")
            A(f"v_readfirstlane_b32 s{sMODE}, v{P+1}")
            A(f"v_readfirstlane_b32 s{sEP}, v{P+2}")
        A("s_nop 0")
        for rr, sh in ((1, 4), (2, 8), (3, 12)):
            for e in range(8):
                d = T+4*e; s = S+8*G+e
                A(f"v_add_f32_dpp v{s}, v{d+rr}, v{d if rr == 1 else s} row_shl:{sh} row_mask:0xf bank_mask:0xf bound_ctrl:0")
    A(f"v_max3_f32 v{T}, v{S}, v{S+1}, v{S+2}")
    A(f"v_max3_f32 v{T+1}, v{S+3}, v{S+4}, v{S+5}")
    for i in range(6, 30, 4):
        A(f"v_max3_f32 v{T}, v{T}, v{S+i}, v{S+i+1}")
        A(f"v_max3_f32 v{T+1}, v{T+1}, v{S+i+2}, v{S+i+3}")
    A(f"v_max3_f32 v{T}, v{T}, v{S+30}, v{S+31}")
    A(f"v_max_f32 v{T}, v{T}, v{T+1}")
    A(f"s_mov_b64 exec, s[{sM4}:{sM4+1}]")
    A(f"ds_max_f32 v{vA}, v{T} offset:{L_MX}")
    A("s_mov_b64 exec, -1")
    stamp(4)
    for e in range(8): vload(8+e)
    A(f"s_lshl_b32 s{sTT}, s{sXI}, 4")
    A(f"s_lshr_b32 s{sT0}, s{sR}, 1")
    A(f"s_add_u32 s{sTT}, s{sTT}, s{sT0}")
    A(f"s_and_b32 s{sKF}, s{sR}, 1")
    A(f"s_lshr_b32 s{sT0}, s{sTT}, 2")
    A(f"s_lshl_b32 s{sT0}, s{sT0}, 5")
    A(f"s_lshl_b32 s{sT1}, s{sKF}, 4")
    A(f"s_add_u32 s{sT0}, s{sT0}, s{sT1}")
    vOO = Z+2; vB2 = Z+3
    A(f"v_lshrrev_b32 v{Z+1}, 5, v{vLANE}")
    A(f"v_lshl_add_u32 v{vOO}, v{Z+1}, 1, v{vA}")
    A(f"v_add_u32 v{vOO}, s{sT0}, v{vOO}")
    A(f"s_cmp_lg_u32 s{sW}, 0")
    A("s_cbranch_scc1 L_nob2")
    A(f"s_load_dwordx4 s[96:99], s[{sB2}:{sB2+1}], s{sT0}")
    A("L_nob2:")
    A("s_waitcnt lgkmcnt(0)")
    A("s_barrier")
    vM = Z+4
    A(f"ds_read_b32 v{vM}, v{vA} offset:{L_MX}")
    vRW = Z+5
    A(f"v_mul_u32_u24 v{vRW}, 132, v{vA}")
    A(f"v_lshrrev_b32 v{Z+6}, 4, v{vLANE}")
    A(f"v_lshl_add_u32 v{vRW}, v{Z+6}, 7, v{vRW}")
    A(f"s_mul_i32 s{sT0}, s{sW}, {REDW}")
    A(f"s_add_u32 s{sT0}, s{sT0}, {L_RED}")
    A(f"v_add_u32 v{vRW}, s{sT0}, v{vRW}")
    for i in range(4): A(f"v_writelane_b32 v{vB2}, s{96+i}, {i}")
    for i in range(4): A(f"v_writelane_b32 v{vB2}, s{96+i}, {32+i}")
    A("s_waitcnt lgkmcnt(0)")
    A(f"v_mul_f32 v{vM}, s{sC}, v{vM}")
    for i in range(32): A(f"v_fma_f32 v{S+i}, v{S+i}, s{sC}, -v{vM}")
    for i in range(32): A(f"v_exp_f32 v{S+i}, v{S+i}")
    A("s_nop 0")
    for i in range(16): A(f"v_cvt_pk_bf16_f32 v{P+i}, v{S+2*i}, v{S+2*i+1}")
    for e in range(8): vload(16+e)
    vRR = Z+7
    A(f"v_and_b32 v{vRR}, 31, v{vLANE}")
    A(f"v_lshlrev_b32 v{vRR}, 3, v{vRR}")
    A(f"v_mul_u32_u24 v{Z+1}, {4*REDW}, v{Z+1}")
    A(f"v_add_u32 v{vRR}, v{vRR}, v{Z+1}")
    A(f"s_lshr_b32 s{sT0}, s{sW}, 1")
    A(f"s_mul_i32 s{sT1}, s{sT0}, 528")
    A(f"s_and_b32 s{sT2}, s{sW}, 1")
    A(f"s_lshl_b32 s{sT3}, s{sT2}, 8")
    A(f"s_add_u32 s{sT3}, s{sT3}, s{sT1}")
    A(f"s_add_u32 s{sT3}, s{sT3}, {L_RED}")
    A(f"v_add_u32 v{vRR}, s{sT3}, v{vRR}")
    vRL = Z+8
    A(f"v_and_b32 v{vRL}, 7, v{vLANE}")
    A(f"v_mul_u32_u24 v{vRL}, {REDW}, v{vRL}")
    A(f"s_add_u32 s{sT1}, s{sT1}, {L_RED+512}")
    A(f"v_add_u32 v{vRL}, s{sT1}, v{vRL}")
    vMH = Z+9
    A(f"v_readlane_b32 s{sT1}, v{vM}, s{sT0}")
    vPO = Z+10
    A(f"s_lshl_b32 s{sT3}, s{sW}, 9")
    A(f"v_add_u32 v{vPO}, s{sT3}, v{vVO}")
    A(f"s_lshl_b32 s{sT3}, s{sT0}, 4")
    A(f"s_add_u32 s{sT3}, s{sT3}, 4096")
    A(f"v_writelane_b32 v{vPO}, s{sT3}, 32")
    A(f"v_mov_b32 v{vMH}, s{sT1}")
    A(f"s_mov_b32 s{sPM}, -1")
    A(f"s_xor_b32 s{sPM+1}, s{sT2}, 1")
    A(f"s_mul_i32 s{sOB}, s{sXI}, {32*OSTR}")
    A(f"s_add_u32 s{sOB}, s{sOB}, {OBUF}")
    A(f"s_mul_i32 s{sOP}, s{sR}, {OSTR}")
    vG1, vG2 = Z+11, Z+12
    A(f"v_lshrrev_b32 v{vG2}, 3, v{vLANE}")
    A(f"s_lshl_b32 s{sT3}, s{sT0}, 3")
    A(f"v_add_u32 v{vG2}, s{sT3}, v{vG2}")
    A(f"v_mul_u32_u24 v{vG2}, {OSTR}, v{vG2}")
    A(f"v_and_b32 v{vG1}, 7, v{vLANE}")
    A(f"v_lshl_add_u32 v{vG1}, v{vG1}, 4, v{vG2}")
    A(f"s_lshr_b32 s{sT3}, s{sR}, 2")
    A(f"s_lshl_b32 s{sT3}, s{sT3}, 9")
    A(f"s_lshl_b32 s{sT1}, s{sT2}, 8")
    A(f"s_add_u32 s{sT3}, s{sT3}, s{sT1}")
    A(f"v_add_u32 v{vG1}, s{sT3}, v{vG1}")
    A(f"s_lshl_b32 s{sT3}, s{sB}, 4")
    A(f"s_add_u32 s{sT3}, s{sT3}, 4096")
    A(f"v_add_u32 v{vG2}, s{sT3}, v{vG2}")
    vOW = Z+13
    A(f"v_and_b32 v{vOW}, 7, v{vLANE}")
    A(f"v_lshlrev_b32 v{vOW}, 2, v{vOW}")
    A(f"v_and_b32 v{Z+1}, 32, v{vLANE}")
    A(f"v_add_u32 v{vOW}, v{vOW}, v{Z+1}")
    A(f"s_lshl_b32 s{sT3}, s{sW}, 6")
    A(f"v_add_u32 v{vOW}, s{sT3}, v{vOW}")
    vOR = Z+14; vHR = Z+15
    A(f"v_lshlrev_b32 v{vHR}, 4, v{Z+6}")
    A(f"v_lshl_add_u32 v{vOR}, v{vA}, 5, v{vHR}")
    A(f"v_lshl_add_u32 v{vHR}, v{vA}, 4, v{vHR}")
    vTO = Z+16; vT2 = Z+17
    A(f"v_bfe_u32 v{Z+1}, v{vLANE}, 2, 2")
    A(f"s_lshl_b32 s{sT3}, s{sW}, 5")
    A(f"v_lshl_add_u32 v{vT2}, v{vA}, 1, s{sT3}")
    A(f"v_lshl_add_u32 v{vTO}, v{Z+1}, 11, v{vT2}")
    A(f"v_lshl_add_u32 v{vTO}, v{Z+6}, 9, v{vTO}")
    A(f"v_lshl_add_u32 v{vT2}, v{Z+1}, 8, v{vT2}")
    A(f"v_lshl_add_u32 v{vT2}, v{Z+6}, 11, v{vT2}")
    vP2 = Z+18
    A(f"v_lshlrev_b32 v{vP2}, 5, v{vA}")
    A(f"v_lshl_add_u32 v{vP2}, v{Z+6}, 5, v{vP2}")
    A(f"v_and_b32 v{Z+1}, 4, v{vLANE}")
    A(f"v_lshl_add_u32 v{vP2}, v{Z+1}, 2, v{vP2}")
    A(f"s_lshl_b32 s{sT3}, s{sW}, 9")
    A(f"v_add_u32 v{vP2}, s{sT3}, v{vP2}")
    A(f"s_lshl_b32 s{sPB}, s{sRG}, 2")
    A(f"s_and_b32 s{sT3}, s{sR}, 3")
    A(f"s_add_u32 s{sPB}, s{sPB}, s{sT3}")
    A(f"s_lshl_b32 s{sPB}, s{sPB}, 12")
    A(f"s_add_u32 s{sPB}, s{sPB}, {PBUF}")
    A(f"s_add_u32 s{sOP}, s{sOP}, s{sOB}")
    vGA = Z+20
    A(f"v_lshlrev_b32 v{vGA}, 1, v{vA}")
    vF = Z+19
    A(f"v_lshrrev_b32 v{vF}, 2, v{vLANE}")
    A(f"v_lshlrev_b32 v{vF}, 14, v{vF}")
    A(f"v_lshl_add_u32 v{vF}, v{vA}, 2, v{vF}")
    A(f"s_lshr_b32 s{sT0}, s{sTT}, 5")
    A(f"s_lshl_b32 s{sT0}, s{sT0}, 12")
    A(f"s_and_b32 s{sT1}, s{sTT}, 31")
    A(f"s_lshl_b32 s{sT1}, s{sT1}, 7")
    A(f"s_add_u32 s{sT0}, s{sT0}, s{sT1}")
    A(f"s_lshl_b32 s{sT1}, s{sKF}, 6")
    A(f"s_add_u32 s{sT0}, s{sT0}, s{sT1}")
    A(f"s_add_u32 s{sH0}, s{sT0}, {PBUF}")
    A(f"s_add_u32 s{sH0+1}, s{sH0}, {262144}")
    A(f"s_add_u32 s{sH0+2}, s{sH0}, {2*262144}")
    A(f"s_add_u32 s{sH0+3}, s{sH0}, {3*262144}")
    A(f"s_and_b32 s{sKF}, s{sTT}, 3")
    A(f"s_lshl_b32 s{sT0}, s{sKF}, 10")
    A(f"v_add_u32 v{vOO}, s{sT0}, v{vOO}")
    A(f"v_lshlrev_b32 v{Z+1}, 16, v{vB2}")
    A(f"v_and_b32 v{vB2}, 0xffff0000, v{vB2}")
    A("s_mov_b32 exec_hi, 0")
    A(f"v_mov_b32 v{vB2}, v{Z+1}")
    A("s_mov_b32 exec_hi, -1")
    def latew():
        A(f"s_lshl_b32 s{sT0}, s{sRG}, 16")
        A(f"s_and_b32 s{sT1}, s{sR}, 3")
        A(f"s_lshl_b32 s{sT1}, s{sT1}, 8")
        A(f"s_lshl_b32 s{sT2}, s{sW}, 13")
        A(f"s_add_u32 s{sT0}, s{sT0}, s{sT2}")
        A(f"s_add_u32 s{sT0}, s{sT0}, s{sT1}")
        A(f"s_mov_b32 s{TS}, s{sWO}")
        A(f"s_mov_b32 s{TS+1}, s{sWO+1}")
        A(f"s_mov_b32 s{TS+2}, {4096*512*2}")
        A(f"s_mov_b32 s{TS+3}, 0x20000")
        A(f"v_lshlrev_b32 v{vC}, 10, v{Z+6}")
        A(f"v_and_b32 v{vB}, 0xf0, v{vVO}")
        A(f"v_add_u32 v{vC}, v{vB}, v{vC}")
        A(f"s_lshl_b32 s{sT2}, s{sW}, 11")
        A(f"s_add_u32 m0, s{sT2}, {L_WO}")
        A(f"s_mul_i32 s{sT3}, s{sRG}, {28*1024}")
        A(f"buffer_load_dwordx4 v{vC}, {srd(TS)}, s{sT0} offen {wflags} lds")
        A(f"s_add_u32 m0, m0, 1024")
        A(f"s_add_u32 s{sT0}, s{sT0}, 4096")
        A(f"buffer_load_dwordx4 v{vC}, {srd(TS)}, s{sT0} offen {wflags} lds")
        A(f"s_mov_b32 s{TS}, s{sW2}")
        A(f"s_mov_b32 s{TS+1}, s{sW2+1}")
        A(f"s_mov_b32 s{TS+2}, {1792*512*2}")
        A(f"s_lshl_b32 s{sT2}, s{sW}, 10")
        A(f"s_add_u32 m0, s{sT2}, {L_W2}")
        A(f"s_lshl_b32 s{sT2}, s{sW}, 12")
        A(f"s_add_u32 s{sT3}, s{sT3}, s{sT2}")
        A(f"s_add_u32 s{sT3}, s{sT3}, s{sT1}")
        A(f"buffer_load_dwordx4 v{vC}, {srd(TS)}, s{sT3} offen {wflags} lds")
    NLATE = 3
    for m in range(4):
        base = vreg(8*m)
        if m == 1:
            if wpos != "last": latew()
            for e in range(8): vload(24+e)
            if wpos == "last": latew()
        for p_ in range(4):
            if m == 0: A(f"s_waitcnt vmcnt({16 + (3-p_)*2})")
            else: A(f"s_waitcnt vmcnt({(3-m)*8 + (3-p_)*2 + (NLATE if (wpos == 'last' or m < 3) else 0)})")
            for c2 in range(4):
                a = base + 8*p_ + c2; b_ = a + 4
                A(f"v_perm_b32 v{T+8*c2+p_}, v{b_}, v{a}, s{sSEL_LO}")
                A(f"v_perm_b32 v{T+8*c2+4+p_}, v{b_}, v{a}, s{sSEL_HI}")
        A(f"v_mfma_f32_16x16x32_bf16 {q4(LQ)}, {q4(ONES)}, {q4(P+4*m)}, {'0' if m == 0 else q4(LQ)}")
        A("s_nop 0")
        for c in range(8):
            A(f"v_mfma_f32_16x16x32_bf16 {q4(ACC+4*c)}, {q4(T+4*c)}, {q4(P+4*m)}, {'0' if m == 0 else q4(ACC+4*c)}")
    stamp(5)
    A(f"s_mov_b64 exec, s[{sM4}:{sM4+1}]")
    A("s_nop 0")
    for c in range(8):
        A(f"ds_write_b128 v{vRW}, {q4(ACC+4*c)} offset:{16*c}")
    A("s_mov_b64 exec, 15")
    A(f"ds_write_b32 v{vRW}, v{LQ} offset:512")
    A("s_mov_b64 exec, -1")
    A("s_waitcnt lgkmcnt(0)")
    A("s_barrier")
    for k in range(4):
        A(f"ds_read_b64 {q2(T+2*k)}, v{vRR} offset:{k*REDW}")
    A(f"ds_read_b32 v{T+8}, v{vRL}")
    A(f"s_cmp_eq_u32 s{sMODE}, 1")
    A("s_waitcnt lgkmcnt(3)")
    A(f"v_add_f32 v{T}, v{T}, v{T+2}")
    A(f"v_add_f32 v{T+1}, v{T+1}, v{T+3}")
    A("s_waitcnt lgkmcnt(1)")
    A(f"v_add_f32 v{T+4}, v{T+4}, v{T+6}")
    A(f"v_add_f32 v{T+5}, v{T+5}, v{T+7}")
    A(f"v_add_f32 v{T}, v{T}, v{T+4}")
    A(f"v_add_f32 v{T+2}, v{T+1}, v{T+5}")
    A(f"v_mov_b32 v{T+4}, v{T}")
    A(f"v_mov_b32 v{T+5}, v{T+2}")
    A("s_waitcnt lgkmcnt(0)")
    A(f"v_add_f32_dpp v{T+8}, v{T+8}, v{T+8} quad_perm:[1,0,3,2] row_mask:0xf bank_mask:0xf")
    A(f"v_permlane32_swap_b32 v{T}, v{T+4}")
    A(f"v_permlane32_swap_b32 v{T+2}, v{T+5}")
    A(f"v_add_f32_dpp v{T+8}, v{T+8}, v{T+8} quad_perm:[2,3,0,1] row_mask:0xf bank_mask:0xf")
    A(f"v_add_f32 v{T}, v{T}, v{T+4}")
    A(f"v_add_f32 v{T+2}, v{T+2}, v{T+5}")
    A(f"v_add_f32_dpp v{T+8}, v{T+8}, v{T+8} row_half_mirror row_mask:0xf bank_mask:0xf")
    A(f"v_mov_b32 v{T+1}, v{vTAG}")
    A(f"v_mov_b32 v{T+3}, v{vTAG}")
    A("s_mov_b32 exec_lo, 0")
    A(f"v_mov_b32 v{T}, v{vMH}")
    A(f"v_mov_b32 v{T+2}, v{T+8}")
    A(f"s_mov_b64 exec, s[{sPM}:{sPM+1}]")
    A("s_cbranch_scc1 L_olocal")
    A(f"buffer_store_dwordx4 {q4(T)}, v{vPO}, {srd(WSR)}, s{sOP} offen sc1")
    A("s_branch L_ostored")
    A("L_olocal:")
    A(f"buffer_store_dwordx4 {q4(T)}, v{vPO}, {srd(WSR)}, s{sOP} offen")
    A("L_ostored:")
    A("s_mov_b64 exec, -1")
    stamp(6)
    WA = ACC
    G = T+12
    def oloads():
        A(f"buffer_load_dwordx4 {q4(G)}, v{vG2}, {srd(WSR)}, s{sOB} offen sc1")
        A(f"buffer_load_dwordx4 {q4(G+4)}, v{vG1}, {srd(WSR)}, s{sOB} offen sc1")
        A(f"buffer_load_dwordx4 {q4(G+8)}, v{vG1}, {srd(WSR)}, s{sOB} offen offset:128 sc1")
    if wpos == "last":
        A("s_waitcnt vmcnt(1)")
        A("s_barrier")
    stamp(1)
    A(f"ds_read_b64_tr_b16 {q2(WA+8)}, v{vT2} offset:{L_W2}")
    A(f"ds_read_b64_tr_b16 {q2(WA+10)}, v{vT2} offset:{L_W2+1024}")
    A(f"ds_read_b128 {q4(WA+12)}, v{vHR} offset:{L_HS}")
    A(f"ds_read_b64 {q2(WA+16)}, v{vGA} offset:{L_GS}")
    for t in range(2):
        for p_ in range(2):
            A(f"ds_read_b64_tr_b16 {q2(WA+4*t+2*p_)}, v{vTO} offset:{L_WO + t*8192 + p_*256}")
    oloads()
    A("s_waitcnt lgkmcnt(4)")
    FF = WA+20
    A(f"v_mfma_f32_16x16x32_bf16 {q4(FF)}, {q4(WA+8)}, {q4(WA+12)}, 0")
    vGG, vOMG = WA+16, WA+17
    A(f"v_readlane_b32 s{sT0}, v{vOMG}, s{sKF}")
    A(f"s_mov_b32 s{sCNT}, {spin}")
    A("s_branch L_ochk")
    A("L_opoll:")
    oloads()
    A(f"s_sub_u32 s{sCNT}, s{sCNT}, 1")
    A("s_cbranch_scc1 L_odone")
    A("L_ochk:")
    A(f"s_mov_b64 s[{sT2}:{sT2+1}], exec")
    A("s_waitcnt vmcnt(0)")
    for rr in (G+1, G+3, G+5, G+7, G+9, G+11):
        A(f"v_cmpx_eq_u32 vcc, v{rr}, v{vTAG}")
    A(f"s_andn2_b64 exec, s[{sT2}:{sT2+1}], exec")
    A("s_cbranch_execnz L_opoll")
    A("L_odone:")
    A("s_mov_b64 exec, -1")
    A("s_waitcnt vmcnt(0)")
    A(f"v_mul_f32 v{vB2}, s{sT0}, v{vB2}")
    stamp(7)
    mm, tt = T, T+1
    A(f"v_max_f32_dpp v{mm}, v{G}, v{G} row_ror:8 row_mask:0xf bank_mask:0xf")
    A(f"v_mul_f32 v{FF}, v{FF}, v{vOMG}")
    A(f"v_mov_b32 v{tt}, v{mm}")
    A(f"v_mul_f32 v{FF+1}, v{FF+1}, v{vOMG}")
    A(f"v_mul_f32 v{FF+2}, v{FF+2}, v{vOMG}")
    A(f"v_permlane16_swap_b32 v{mm}, v{tt}")
    A(f"v_max_f32 v{mm}, v{mm}, v{tt}")
    A(f"v_mov_b32 v{tt}, v{mm}")
    A(f"v_mul_f32 v{FF+3}, v{FF+3}, v{vOMG}")
    A("s_nop 0")
    A(f"v_permlane32_swap_b32 v{mm}, v{tt}")
    A(f"v_max_f32 v{mm}, v{mm}, v{tt}")
    A(f"v_sub_f32 v{mm}, v{G}, v{mm}")
    A(f"v_exp_f32 v{mm}, v{mm}")
    A("s_nop 0")
    a0, a1, a2, a3, ll = G+4, G+6, G+8, G+10, G+2
    for rr in (ll, a0, a2, a1, a3):
        A(f"v_mul_f32 v{rr}, v{rr}, v{mm}")
    A(f"v_mov_b32 v{tt}, v{ll}")
    A(f"v_permlane32_swap_b32 v{a0}, v{a2}")
    A(f"v_permlane32_swap_b32 v{a1}, v{a3}")
    A(f"v_permlane32_swap_b32 v{ll}, v{tt}")
    A(f"v_add_f32 v{a0}, v{a0}, v{a2}")
    A(f"v_add_f32 v{a1}, v{a1}, v{a3}")
    A(f"v_add_f32 v{ll}, v{ll}, v{tt}")
    A(f"v_mov_b32 v{a2}, v{a0}")
    A(f"v_mov_b32 v{a3}, v{a1}")
    A(f"v_mov_b32 v{tt}, v{ll}")
    A(f"v_permlane16_swap_b32 v{a0}, v{a2}")
    A("s_nop 0")
    A(f"v_permlane16_swap_b32 v{ll}, v{tt}")
    A(f"v_permlane16_swap_b32 v{a1}, v{a3}")
    A(f"v_add_f32 v{ll}, v{ll}, v{tt}")
    A(f"v_add_f32 v{a0}, v{a0}, v{a2}")
    A(f"v_add_f32 v{a1}, v{a1}, v{a3}")
    A(f"v_add_f32_dpp v{ll}, v{ll}, v{ll} row_ror:8 row_mask:0xf bank_mask:0xf")
    A(f"v_add_f32_dpp v{a0}, v{a0}, v{a0} row_ror:8 row_mask:0xf bank_mask:0xf")
    A(f"v_add_f32_dpp v{a1}, v{a1}, v{a1} row_ror:8 row_mask:0xf bank_mask:0xf")
    A(f"v_rcp_f32 v{ll}, v{ll}")
    A("s_nop 0")
    A(f"v_mul_f32 v{a0}, v{a0}, v{ll}")
    A(f"v_mul_f32 v{a1}, v{a1}, v{ll}")
    A(f"v_cvt_pk_bf16_f32 v{a0}, v{a0}, v{a1}")
    A(f"ds_write_b32 v{vOW}, v{a0} offset:{L_OS}")
    A("s_waitcnt lgkmcnt(0)")
    A("s_barrier")
    A(f"ds_read_b128 {q4(T)}, v{vOR} offset:{L_OS}")
    A(f"ds_read_b128 {q4(T+4)}, v{vOR} offset:{L_OS+64}")
    A(f"v_and_b32 v{T+12}, 4, v{vLANE}")
    A(f"v_cmp_ne_u32 vcc, 0, v{T+12}")
    A("s_waitcnt lgkmcnt(1)")
    A(f"v_mfma_f32_16x16x32_bf16 {q4(T+8)}, {q4(WA)}, {q4(T)}, 0")
    A("s_waitcnt lgkmcnt(0)")
    A(f"v_mfma_f32_16x16x32_bf16 {q4(T+8)}, {q4(WA+4)}, {q4(T+4)}, {q4(T+8)}")
    A(f"v_cndmask_b32 v{FF}, v{FF}, v{FF+2}, vcc")
    A(f"v_cndmask_b32 v{FF+1}, v{FF+1}, v{FF+3}, vcc")
    A(f"v_mov_b32 v{T+13}, v{vTAG}")
    A(f"v_mov_b32 v{T+15}, v{vTAG}")
    A("s_mov_b32 s8, 0x00ff00ff")
    A("s_mov_b32 s9, 0x00ff00ff")
    A("s_nop 1")
    A(f"v_cndmask_b32 v{T+8}, v{T+8}, v{T+10}, vcc")
    A(f"v_cndmask_b32 v{T+9}, v{T+9}, v{T+11}, vcc")
    A(f"v_fma_f32 v{T+12}, v{T+8}, v{vGG}, v{FF}")
    A(f"v_fma_f32 v{T+14}, v{T+9}, v{vGG}, v{FF+1}")
    A("s_mov_b64 exec, s[8:9]")
    A(f"buffer_store_dwordx4 {q4(T+12)}, v{vP2}, {srd(WSR)}, s{sPB} offen sc1")
    A("s_mov_b64 exec, -1")
    stamp(8)
    A(f"s_cmp_eq_u32 s{sW}, 0")
    A("s_cbranch_scc0 L_fin")
    A(f"s_mov_b32 s{sCNT}, {spin}")
    H = T+16
    A("L_ppoll:")
    for k in range(4):
        A(f"buffer_load_dwordx4 {q4(H+4*k)}, v{vF}, {srd(WSR)}, s{sH0+k} offen sc1")
    A(f"s_sub_u32 s{sCNT}, s{sCNT}, 1")
    A("s_cbranch_scc1 L_pdone")
    A(f"s_mov_b64 s[{sT2}:{sT2+1}], exec")
    A("s_waitcnt vmcnt(0)")
    for k in range(8):
        A(f"v_cmpx_eq_u32 vcc, v{H+2*k+1}, v{vTAG}")
    A(f"s_andn2_b64 exec, s[{sT2}:{sT2+1}], exec")
    A("s_cbranch_execnz L_ppoll")
    A("L_pdone:")
    A("s_mov_b64 exec, -1")
    A("s_waitcnt vmcnt(0)")
    stamp(9)
    A(f"v_add_f32 v{H}, v{H}, v{H+4}")
    A(f"v_add_f32 v{H+2}, v{H+2}, v{H+6}")
    A(f"v_add_f32 v{H+8}, v{H+8}, v{H+12}")
    A(f"v_add_f32 v{H+10}, v{H+10}, v{H+14}")
    A(f"v_add_f32 v{H}, v{H}, v{H+8}")
    A(f"v_add_f32 v{H+2}, v{H+2}, v{H+10}")
    A("s_nop 1")
    A(f"v_permlane32_swap_b32 v{H}, v{H+2}")
    A(f"v_add_f32 v{H}, v{H}, v{H+2}")
    A(f"v_mov_b32 v{H+1}, v{H}")
    A("s_nop 1")
    A(f"v_permlane16_swap_b32 v{H}, v{H+1}")
    A(f"v_add_f32 v{H}, v{H}, v{H+1}")
    A("s_nop 1")
    A(f"v_add_f32_dpp v{H}, v{H}, v{H} row_ror:8 row_mask:0xf bank_mask:0xf")
    A("s_nop 1")
    A(f"v_add_f32_dpp v{H}, v{H}, v{H} row_ror:4 row_mask:0xf bank_mask:0xf")
    A(f"v_add_f32 v{H}, v{H}, v{vB2}")
    A(f"v_cvt_pk_bf16_f32 v{H}, v{H}, v{H}")
    A("s_mov_b32 exec_lo, 15")
    A("s_mov_b32 exec_hi, 15")
    A(f"global_store_short v{vOO}, v{H}, s[{sOUT}:{sOUT+1}]")
    A("s_cmp_eq_u32 s2, 0")
    A("s_cbranch_scc0 L_fin")
    A("s_mov_b64 exec, 1")
    A(f"v_mov_b32 v{H+1}, s{sEP}")
    A(f"buffer_store_dword v{H+1}, off, {srd(WSR)}, 0 sc1")
    A("L_fin:")
    if stamps:
        A("s_mov_b64 exec, -1")
        stamp(10)
        A("s_waitcnt lgkmcnt(0)")
        A(f"s_lshl_b32 s8, s2, 3"); A(f"s_add_u32 s8, s8, s{sW}"); A("s_lshl_b32 s8, s8, 7"); A(f"s_add_u32 s8, s8, {STAMP}")
        A("s_getreg_b32 s94, hwreg(HW_REG_XCC_ID)")
        A(f"s_mov_b32 s95, s{sMODE}")
        for i in range(24): A(f"v_mov_b32 v{T+i}, s{72+i}")
        A("s_mov_b64 exec, 1")
        for i in range(6): A(f"buffer_store_dwordx4 {q4(T+4*i)}, off, {srd(WSR)}, s8 offset:{16*i}")
    A("L_end:")
    L = [l for l in L if l is not None]
    if codepf:
        i0 = L.index("CODEPF")
        nbytes = 7*(len(L) - i0)
        npf = min(8, (nbytes + 1023)//1024)
        pf = []
        for k in range(npf):
            if k == 4:
                pf += [f"s_add_u32 s{sT0}, s{sT0}, 4096", f"s_addc_u32 s{sT0+1}, s{sT0+1}, 0"]
            pf.append(f"global_load_dwordx4 {q4(T)}, v{vVO}, s[{sT0}:{sT0+1}] offset:{(k%4)*1024}")
        L[i0:i0+1] = pf
    body = "\n".join(("    " + l) if not l.endswith(":") else l for l in L)
    return HDR + f"""; @launch grid=(256,1,1) block=(512,1,1) lds={L_END}
.amdgcn_target "amdgcn-amd-amdhsa--gfx950"
.text
.globl {KN}_kernel
.p2align 8
.type {KN}_kernel,@function
{KN}_kernel:
{body}
    s_endpgm
    .fill 2048, 4, 0xbf800000
.section .rodata,"a"
.p2align 6
.amdhsa_kernel {KN}_kernel
  .amdhsa_next_free_vgpr 256
  .amdhsa_next_free_sgpr 102
  .amdhsa_accum_offset 256
  .amdhsa_group_segment_fixed_size 0
  .amdhsa_kernarg_size 112
  .amdhsa_user_sgpr_count 2
  .amdhsa_user_sgpr_kernarg_segment_ptr 1
  .amdhsa_system_sgpr_workgroup_id_x 1
.end_amdhsa_kernel
"""

if __name__ == "__main__":
    name = sys.argv[1]; kw = json.loads(sys.argv[2]) if len(sys.argv) > 2 else {}
    open(name, "w").write(gen(**kw))
```
